```python
import torch

def _softmax(x, axis=-1):
    return torch.softmax(x, dim=axis)
def _gelu(x):
    return torch.nn.functional.gelu(x, approximate="tanh")
def _silu(x):
    return torch.nn.functional.silu(x)
def _sigmoid(x):
    return torch.sigmoid(x)
def _layernorm(x, axis=-1, eps=1e-5):
    m = x.mean(dim=axis, keepdim=True)
    v = x.var(dim=axis, keepdim=True, unbiased=False)
    return (x - m) / torch.sqrt(v + eps)
def _scatter_add(tgt, idx, src, axis=0):
    return tgt.clone().index_add_(axis, idx, src)
def _segment_sum(src, seg, n):
    out = torch.zeros((n,) + src.shape[1:], dtype=src.dtype)
    return out.index_add_(0, seg, src)
def _pad(x, pw):
    flat = tuple(v for pair in reversed(pw) for v in pair)
    return torch.nn.functional.pad(x, flat)

kernel_name = 'standalone__gqa_softmax__near_ridge'

def setup_inputs():

    _w = (lambda a: (lambda t: t.to(torch.bfloat16) if t.is_floating_point() else t)(torch.as_tensor(a)))
    B, Hq, Hkv, Sq, Sk, D = 8, 32, 4, 32, 2048, 128
    return {
        "q": _w((lambda *s: torch.randn(*s, dtype=torch.bfloat16) * 0.8)(B, Hq, Sq, D)),
        "k": _w((lambda *s: torch.randn(*s, dtype=torch.bfloat16) * 0.8)(B, Hkv, Sk, D)),
        "v": _w((lambda *s: torch.randn(*s, dtype=torch.bfloat16) * 0.05)(B, Hkv, Sk, D)),
    }

def reference(q, k, v):
    B, Hq, Sq, D = q.shape
    Hkv = k.shape[1]
    rep = Hq // Hkv
    k = (lambda x, n, axis: torch.repeat_interleave(x, n, dim=axis))(k, rep, axis=1)
    v = (lambda x, n, axis: torch.repeat_interleave(x, n, dim=axis))(v, rep, axis=1)
    scale = D ** -0.5
    scores = torch.einsum("bhqd,bhkd->bhqk", q, k) * scale
    p = _softmax(scores, axis=-1)
    return torch.einsum("bhqk,bhkd->bhqd", p, v)
```

```python
import re

TRANS = ("v_exp_f32", "v_log_f32", "v_rcp_f32", "v_rsq_f32", "v_sqrt_f32", "v_sin_f32", "v_cos_f32", "v_rcp_iflag_f32")

def regs_of(tok):
    tok = tok.strip()
    tok = tok.lstrip("-")
    m = re.fullmatch(r"abs\((.*)\)", tok) or re.fullmatch(r"\|(.*)\|", tok)
    if m: tok = m.group(1)
    m = re.fullmatch(r"([vsa])(\d+)", tok)
    if m: return {(m.group(1), int(m.group(2)))}
    m = re.fullmatch(r"([vsa])\[(\d+):(\d+)\]", tok)
    if m: return {(m.group(1), i) for i in range(int(m.group(2)), int(m.group(3)) + 1)}
    if tok in ("vcc", "vcc_lo", "vcc_hi"): return {("vcc", 0)}
    if tok in ("exec", "exec_lo", "exec_hi"): return {("exec", 0)}
    if tok == "m0": return {("m0", 0)}
    return set()

class Ins:
    __slots__ = ("text", "op", "kind", "w", "r", "ws", "A", "B", "C", "D", "passes", "storedata", "wide")

def parse(text):
    t = text.split(";")[0].strip()
    ins = Ins(); ins.text = text
    parts = t.split(None, 1)
    op = parts[0]; ins.op = op
    rest = parts[1] if len(parts) > 1 else ""
    ops = [o.strip() for o in re.split(r",(?![^\[]*\])", rest)] if rest else []
    mods = ""
    if ops:
        l = ops[-1].split(None, 1)
        ops[-1] = l[0]
        mods = l[1] if len(l) > 1 else ""
    R = [regs_of(o) for o in ops]
    ins.w = set(); ins.r = set(); ins.ws = 1; ins.A = ins.B = ins.C = ins.D = set(); ins.passes = 0
    ins.storedata = set(); ins.wide = False
    if op == "s_nop":
        ins.kind = "nop"; ins.ws = int(ops[0], 0) + 1
    elif op.startswith("v_mfma"):
        ins.kind = "mfma"; ins.D, ins.A, ins.B, ins.C = R[0], R[1], R[2], R[3]
        ins.w = set(R[0]); ins.r = R[1] | R[2] | R[3]
        ins.passes = 8 if "32x32x16" in op else (4 if "16x16x32" in op else 16)
    elif op.startswith("v_"):
        ins.kind = "valu"
        if op.startswith("v_permlane") and "swap" in op:
            ins.w = R[0] | R[1]; ins.r = R[0] | R[1]
        elif op.startswith("v_cmp"):
            ins.w = set(R[0]); ins.r = set().union(*R[1:])
        elif op.startswith(("v_add_co", "v_sub_co", "v_addc_co", "v_subb_co")):
            ins.w = R[0] | R[1]; ins.r = set().union(*R[2:])
        else:
            ins.w = set(R[0]); ins.r = set().union(*R[1:]) if len(R) > 1 else set()
            if op.startswith(("v_fmac", "v_dot2c", "v_pk_fmac")): ins.r |= R[0]
            if op.startswith("v_cndmask") and len(ops) == 3: ins.r |= {("vcc", 0)}
    elif op.startswith("ds_"):
        ins.kind = "ds"
        if op.startswith(("ds_read", "ds_bpermute", "ds_permute", "ds_swizzle")) or "_rtn_" in op:
            ins.w = set(R[0]); ins.r = set().union(*R[1:])
        else:
            ins.r = set().union(*R)
    elif op.startswith(("buffer_", "global_")):
        ins.kind = "vmem"
        lds = re.search(r"\blds\b", mods) is not None or "_lds_" in op
        if op in ("buffer_inv", "buffer_wbl2"):
            pass
        elif lds:
            ins.kind = "dma"; ins.r = set().union(*R) | {("m0", 0)}
        elif "load" in op:
            ins.w = set(R[0]); ins.r = set().union(*R[1:])
        elif "atomic" in op:
            ret = re.search(r"\bsc0\b", mods) is not None
            if op.startswith("global_") and ret:
                ins.w = set(R[0]); ins.r = set().union(*R[1:])
            else:
                ins.r = set().union(*R)
                if ret: ins.w = set(R[0])
        else:
            ins.r = set().union(*R)
            ins.storedata = R[0] if op.startswith("buffer_") else R[1]
            ins.wide = op.endswith(("x3", "x4"))
    elif op.startswith("s_"):
        ins.kind = "salu"
        if op.startswith(("s_cmp", "s_cbranch", "s_branch", "s_waitcnt", "s_barrier", "s_endpgm", "s_setprio", "s_sleep")):
            ins.r = set().union(*R) if R else set()
        else:
            ins.w = set(R[0]) if R else set(); ins.r = set().union(*R[1:]) if len(R) > 1 else set()
            if "saveexec" in op: ins.w |= {("exec", 0)}
            if op.startswith(("s_addk", "s_mulk")): ins.r |= R[0]
    else:
        raise ValueError("unknown op " + text)
    return ins

def need(p, c):
    n = 0
    vw = {x for x in p.w if x[0] in "va"}
    sw = {x for x in p.w if x[0] in ("s", "vcc")}
    if p.kind == "valu":
        if c.kind == "mfma" and vw & c.r: n = max(n, 2)
        if c.kind == "valu":
            if p.op.startswith(TRANS) and not c.op.startswith(TRANS) and vw & c.r: n = max(n, 1)
            if p.op.startswith(TRANS) and vw & c.r: n = max(n, 1)
            if c.op.startswith("v_permlane") and vw & c.r: n = max(n, 2)
            if c.op.startswith(("v_readlane", "v_readfirstlane")) and vw & c.r: n = max(n, 1)
            if "dpp" in c.text and vw & c.r: n = max(n, 2)
            if "sdwa" in p.op and vw & (c.r | c.w): n = max(n, 1)
            if sw & c.r: n = max(n, 4 if c.op.startswith(("v_readlane", "v_writelane")) else 2)
        if c.kind in ("vmem", "dma") and sw & c.r: n = max(n, 5)
    if p.kind == "mfma":
        big = {2: 5, 4: 8, 8: 12, 16: 20}[p.passes]
        ovl = {2: 4, 4: 6, 8: 10, 16: 18}[p.passes]
        war = {2: 1, 4: 3, 8: 7, 16: 15}[p.passes]
        if c.kind == "mfma":
            if p.D & (c.A | c.B): n = max(n, big)
            if p.D & c.C and not (p.D == c.C and p.passes == c.passes): n = max(n, ovl)
            if p.D & c.D and not (p.D == c.C and p.passes == c.passes): n = max(n, ovl)
        elif c.kind in ("valu", "vmem", "ds", "dma"):
            if p.D & (c.r | c.w): n = max(n, big)
            if c.kind == "valu" and p.C & c.w: n = max(n, war)
    if p.kind == "salu" and ("m0", 0) in p.w and c.kind == "dma": n = max(n, 1)
    if p.kind == "vmem" and p.wide and p.storedata & c.w:
        n = max(n, 2 if c.kind in ("valu", "mfma") else 1)
    return n

class Asm:
    def __init__(self):
        self.lines = []
        self.hist = []
        self.nops = 0
    def raw(self, text):
        self.lines.append(text)
    def label(self, name, flush=True):
        if flush: self.fence()
        self.lines.append(name + ":")
    def fence(self, n=None):
        worst = 0; elapsed = 0
        for p in reversed(self.hist):
            if p.kind == "mfma": req = {2: 5, 4: 8, 8: 12, 16: 20}[p.passes]
            elif p.kind == "valu": req = 5 if any(x[0] in ("s", "vcc") for x in p.w) else 2
            elif p.kind == "vmem" and p.wide and p.storedata: req = 2
            elif p.kind == "salu" and ("m0", 0) in p.w: req = 1
            else: req = 0
            worst = max(worst, req - elapsed)
            elapsed += p.ws
            if elapsed > 24: break
        self._nop(worst)
        self.hist = []
    def _nop(self, k):
        while k > 0:
            m = min(k, 16)
            t = f"  s_nop {m-1}"
            self.lines.append(t); self.hist.append(parse(t)); self.nops += m
            k -= m
    def __call__(self, text):
        for line in text.strip("\n").split("\n"):
            s = line.split(";")[0].strip()
            if not s:
                if line.strip(): self.lines.append("  " + line.strip())
                continue
            if s.endswith(":"):
                self.label(s[:-1]); continue
            c = parse(s)
            elapsed = 0; worst = 0
            for p in reversed(self.hist):
                worst = max(worst, need(p, c) - elapsed)
                elapsed += p.ws
                if elapsed > 24: break
            self._nop(worst)
            self.lines.append("  " + line.strip())
            self.hist.append(c)
            if len(self.hist) > 64: self.hist = self.hist[-40:]
            if c.op.startswith(("s_branch", "s_cbranch")):
                pass
    def text(self):
        return "\n".join(self.lines) + "\n"
```

```python
import sys, math
from asmgen import Asm
flags = set(sys.argv[1:])
STAMPS = "stamps" in flags
FAST = "nofast" not in flags
KVPOL = "" if "kvplain" in flags else " nt"
QPOL = " nt" if "qnt" in flags else ""
NAME = "standalone__gqa_softmax__near_ridge_kernel"

KB, VB_, QB = 0, 65536, 98304
WS_DATA, WS_STATS, WS_FLAGS = 0, 16 << 20, 17 << 20
C = (128 ** -0.5) * math.log2(math.e)
import struct
def f2u(x): return struct.unpack("<I", struct.pack("<f", x))[0]

a = Asm()
a.raw(f"""; GQA attention (B8 Hq32 Hkv4 Sq32 Sk2048 D128), split-K over 8 workgroups per (b,hkv) pair.
; @launch grid=(256,1,1) block=(512,1,1) lds=163840
.amdgcn_target "amdgcn-amd-amdhsa--gfx950"
.text
.globl {NAME}
.p2align 8
.type {NAME},@function
{NAME}:""")

outst = []
def vm_issue(tag): outst.append(tag)
def vm_wait(tag):
    idx = max(i for i, t in enumerate(outst) if t == tag)
    n = len(outst) - 1 - idx
    a(f"s_waitcnt vmcnt({n})")
    del outst[:idx + 1]

nst = [0]
def stamp():
    if not STAMPS: return
    i = nst[0]; nst[0] += 1
    a(f"s_memrealtime s[{64+2*i}:{65+2*i}]")
    a("s_waitcnt lgkmcnt(0)")

a(f"""
s_cmp_ge_u32 s2, 256
s_cbranch_scc1 L_done
s_load_dwordx8 s[4:11], s[0:1], 0
s_load_dwordx4 s[12:15], s[0:1], 32
""")
if STAMPS:
    a("s_memrealtime s[64:65]"); nst[0] = 1
a(f"""
v_lshrrev_b32 v20, 6, v0
v_and_b32 v1, 63, v0
v_readfirstlane_b32 s36, v20
v_lshrrev_b32 v20, 4, v1                 ; r = lane>>4
v_and_b32 v21, 15, v1                    ; ch
v_xor_b32 v22, v21, v20                  ; ch ^ r
v_lshlrev_b32 v22, 4, v22
v_lshl_add_u32 v2, v20, 8, v22           ; pattern g&3==0
v_xor_b32 v3, 64, v2
v_xor_b32 v4, 0x80, v2
v_xor_b32 v5, 0xc0, v2
v_lshlrev_b32 v22, 2, v20
v_xor_b32 v22, v21, v22                  ; ch ^ (r<<2)
v_lshlrev_b32 v22, 4, v22
v_lshl_add_u32 v6, v20, 8, v22
s_and_b32 s37, s2, 7
s_lshr_b32 s38, s2, 3
s_lshl_b32 s37, s37, 2
s_lshr_b32 s39, s38, 3
s_add_u32 s37, s37, s39                  ; pair
s_and_b32 s38, s38, 7                    ; chunk
s_and_b32 s39, s36, 3
s_lshl_b32 s39, s39, 6
v_xor_b32 v7, s39, v2
s_lshl_b32 s40, s37, 16                  ; q off
s_lshl_b32 s41, s37, 19
s_lshl_b32 s42, s38, 16
s_add_u32 s41, s41, s42                  ; k/v off
s_lshl_b32 s42, s36, 13                  ; wave*8192
s_lshl_b32 s43, s36, 10                  ; wave*1024
s_mov_b32 s18, 65536
s_mov_b32 s19, 0x20000
s_mov_b32 s22, 65536
s_mov_b32 s23, 0x20000
s_mov_b32 s26, 65536
s_mov_b32 s27, 0x20000
s_add_u32 s49, s42, {QB}
s_mov_b32 m0, s49
s_waitcnt lgkmcnt(0)
s_add_u32 s16, s4, s40
s_addc_u32 s17, s5, 0
s_add_u32 s20, s6, s41
s_addc_u32 s21, s7, 0
s_add_u32 s24, s8, s41
s_addc_u32 s25, s9, 0
""")
for half in range(2):
    if half:
        a(f"s_add_u32 m0, m0, 4096")
        a(f"s_add_u32 s45, s42, 4096")
    so = "s45" if half else "s42"
    for g in range(4):
        a(f"buffer_load_dwordx4 v{2+g}, s[16:19], {so} offen offset:{g*1024}{QPOL} lds")
        vm_issue("Q")
a(f"s_add_u32 m0, s43, {KB}")
a(f"s_mov_b32 s45, s43")
for t in range(8):
    a(f"buffer_load_dwordx4 v7, s[20:23], s45 offen{KVPOL} lds")
    vm_issue(f"K{t}")
    if t < 7:
        a(f"s_add_u32 m0, m0, 8192")
        a(f"s_add_u32 s45, s45, 8192")
a(f"s_add_u32 m0, s43, {VB_}")
a(f"s_mov_b32 s45, s43")
for t in range(4):
    a(f"buffer_load_dwordx4 v6, s[24:27], s45 offen{KVPOL} lds")
    vm_issue(f"V{t}")
    a(f"s_add_u32 m0, m0, 8192")
    a(f"s_add_u32 s45, s45, 8192")
stamp()
a(f"""
s_mov_b32 s28, s10
s_mov_b32 s29, s11
s_mov_b32 s30, 0x200000
s_mov_b32 s31, 0x20000
s_mov_b32 s32, s14
s_mov_b32 s33, s15
s_mov_b32 s34, {18<<20}
s_mov_b32 s35, 0x20000
s_mov_b32 s44, {f2u(C):#x}
s_getreg_b32 s48, hwreg(HW_REG_XCC_ID, 0, 4)
s_lshl_b32 s48, s48, 2                   ; 4*xcc
s_lshl_b32 s50, s37, 3
v_mov_b32 v31, s50
s_cmp_lg_u32 s36, 0
s_cbranch_scc1 L_noann
s_memrealtime s[52:53]
s_lshl_b32 s51, 1, s48
s_waitcnt lgkmcnt(0)
v_mov_b32 v22, s51
v_mov_b32 v23, s52
s_mov_b64 exec, 1
global_atomic_add_x2 v31, v[22:23], s[12:13]
s_mov_b64 exec, -1
L_noann:
""")
a(f"""
v_and_b32 v20, 31, v1                    ; row
v_lshrrev_b32 v21, 5, v1                 ; h
v_and_b32 v22, 15, v1
v_xor_b32 v22, v22, v21
v_lshlrev_b32 v22, 4, v22
v_lshl_add_u32 v8, v20, 8, v22           ; kaddr[0]
""")
for s in range(1, 8):
    a(f"v_xor_b32 v{8+s}, {s<<5}, v8")
a(f"""
v_bfe_u32 v20, v1, 2, 2                  ; r
v_and_b32 v22, 3, v1                     ; c
v_bfe_u32 v23, v1, 4, 1                  ; dsub
v_lshl_add_u32 v24, v21, 2, v20          ; 4h + r
v_lshlrev_b32 v24, 8, v24
v_lshl_add_u32 v24, v20, 6, v24          ; + 64*r  (blk=0: 64*(0^r))
v_lshl_add_u32 v24, v23, 5, v24
v_lshl_add_u32 v24, v22, 3, v24
v_add_u32 v16, {VB_}, v24
v_xor_b32 v17, 64, v16
v_xor_b32 v18, 0x80, v16
v_xor_b32 v19, 0xc0, v16
""")
QF, KF, S0, VF, O0 = 32, 64, 96, 224, 32
for s in range(8):
    a(f"v_add_u32 v{224+s}, s49, v{8+s}")
vm_wait("Q")
for s in range(8):
    a(f"ds_read_b128 v[{QF+4*s}:{QF+4*s+3}], v{224+s}")
a("s_waitcnt lgkmcnt(0)")
stamp()
MX = 26
for t in range(8):
    vm_wait(f"K{t}")
    a("s_barrier")
    if t == 0:
        for tt in range(4, 8):
            a(f"buffer_load_dwordx4 v6, s[24:27], s45 offen{KVPOL} lds")
            vm_issue(f"V{tt}")
            if tt < 7:
                a(f"s_add_u32 m0, m0, 8192")
                a(f"s_add_u32 s45, s45, 8192")
    for s in range(8):
        a(f"ds_read_b128 v[{KF+4*s}:{KF+4*s+3}], v{8+s} offset:{t*8192}")
    if t > 0:
        sb = S0 + 16 * (t - 1)
        if t == 1:
            a(f"v_max3_f32 v{MX}, v{sb}, v{sb+1}, v{sb+2}")
            a(f"v_max3_f32 v{MX+1}, v{sb+3}, v{sb+4}, v{sb+5}")
            rest = list(range(6, 16))
        else:
            rest = list(range(16))
        for i in range(0, len(rest), 2):
            m = MX + (i // 2) % 2
            a(f"v_max3_f32 v{m}, v{m}, v{sb+rest[i]}, v{sb+rest[i+1]}")
    sb = S0 + 16 * t
    for s in range(8):
        a(f"s_waitcnt lgkmcnt({7-s})")
        cin = "0" if s == 0 else f"v[{sb}:{sb+15}]"
        a(f"v_mfma_f32_32x32x16_bf16 v[{sb}:{sb+15}], v[{KF+4*s}:{KF+4*s+3}], v[{QF+4*s}:{QF+4*s+3}], {cin}")
stamp()
sb = S0 + 16 * 7
for i in range(0, 16, 2):
    m = MX + (i // 2) % 2
    a(f"v_max3_f32 v{m}, v{m}, v{sb+i}, v{sb+i+1}")
a(f"""
v_max_f32 v{MX}, v{MX}, v{MX+1}
v_mov_b32 v{MX+1}, v{MX}
v_permlane32_swap_b32 v{MX}, v{MX+1}
v_max_f32 v{MX}, v{MX}, v{MX+1}
v_mul_f32 v{MX}, s44, v{MX}
v_mov_b32 v28, 0
v_mov_b32 v29, 0
""")
def softmax_ops(t):
    sb = S0 + 16 * t
    ops = []
    for j in range(8):
        r0, r1 = sb + 2 * j, sb + 2 * j + 1
        ops.append(f"v_fma_f32 v{r0}, v{r0}, s44, -v{MX}")
        ops.append(f"v_fma_f32 v{r1}, v{r1}, s44, -v{MX}")
        ops.append(f"v_exp_f32 v{r0}, v{r0}")
        ops.append(f"v_exp_f32 v{r1}, v{r1}")
        if j > 0:
            p0, p1 = sb + 2 * (j - 1), sb + 2 * (j - 1) + 1
            ops.append(f"v_add_f32 v28, v28, v{p0}")
            ops.append(f"v_add_f32 v29, v29, v{p1}")
            ops.append(f"v_cvt_pk_bf16_f32 v{sb+j-1}, v{p0}, v{p1}")
    p0, p1 = sb + 14, sb + 15
    ops.append(f"v_add_f32 v28, v28, v{p0}")
    ops.append(f"v_add_f32 v29, v29, v{p1}")
    ops.append(f"v_cvt_pk_bf16_f32 v{sb+7}, v{p0}, v{p1}")
    return ops
LOOK = 2
for t in range(LOOK):
    for o in softmax_ops(t): a(o)
def stats_and_nonce():
    a(f"""
v_add_f32 v28, v28, v29
v_mov_b32 v29, v28
v_permlane32_swap_b32 v28, v29
v_add_f32 v27, v28, v29                  ; v26 = m*c, v27 = l
global_load_dwordx2 v[24:25], v31, s[12:13] sc1
""")
    vm_issue("nonce")
for t in range(8):
    vm_wait(f"V{t}")
    a("s_barrier")
    if t == 7: stamp()
    for mh in range(2):
        for blk in range(4):
            f = VF + 4 * (mh * 4 + blk)
            for e in range(2):
                a(f"ds_read_b64_tr_b16 v[{f+2*e}:{f+2*e+1}], v{16+blk} offset:{t*8192+mh*4096+e*2048}")
    ops = softmax_ops(t + LOOK) if t + LOOK < 8 else []
    per = (len(ops) + 7) // 8
    k = 0
    for mh in range(2):
        for blk in range(4):
            i = mh * 4 + blk
            f = VF + 4 * i
            for o in ops[k:k + per]: a(o)
            k += per
            a(f"s_waitcnt lgkmcnt({14-2*i})")
            ob = O0 + 16 * blk
            pb = S0 + 16 * t + 4 * mh
            cin = "0" if (t == 0 and mh == 0) else f"v[{ob}:{ob+15}]"
            a(f"v_mfma_f32_32x32x16_bf16 v[{ob}:{ob+15}], v[{f}:{f+3}], v[{pb}:{pb+3}], {cin}")
    if t + LOOK == 7:
        stats_and_nonce()
a(f"""
v_lshlrev_b32 v20, 4, v1                 ; lane*16
v_and_b32 v21, 31, v1
v_lshlrev_b32 v21, 3, v21                ; row*8
s_lshl_b32 s50, s37, 6
s_add_u32 s50, s50, s38
s_lshl_b32 s50, s50, 3
s_add_u32 s50, s50, s36
s_lshl_b32 s50, s50, 10
s_lshl_b32 s51, s37, 3
s_add_u32 s51, s51, s36                  ; p*8+w
s_lshl_b32 s52, s51, 11
s_add_u32 s52, s52, {WS_STATS}
s_lshl_b32 s53, s38, 8
s_add_u32 s53, s53, s52
s_lshl_b32 s54, s51, 7
s_add_u32 s54, s54, {WS_FLAGS}
""")
vm_wait("nonce")
a(f"""
s_mov_b32 s58, 0x40000
L_nonce:
v_readfirstlane_b32 s46, v24
v_readfirstlane_b32 s47, v25
s_and_b32 s55, s46, 0x0f0f0f0f
s_lshr_b32 s56, s46, 4
s_and_b32 s56, s56, 0x0f0f0f0f
s_add_u32 s55, s55, s56
s_mul_i32 s55, s55, 0x01010101
s_lshr_b32 s55, s55, 24
s_cmp_eq_u32 s55, 8
s_cbranch_scc1 L_nonce_ok
s_sub_u32 s58, s58, 1
s_cmp_eq_u32 s58, 0
s_cbranch_scc1 L_nonce_ok
s_sleep 2
global_load_dwordx2 v[24:25], v31, s[12:13] sc1
s_waitcnt vmcnt(0)
s_branch L_nonce
L_nonce_ok:
s_lshl_b32 s55, 8, s48
s_cmp_eq_u32 s55, s46
s_cselect_b32 s57, 1, 0
s_not_b32 s46, s47
""")
for p in range(8):
    for i in range(4):
        a(f"v_cvt_pk_bf16_f32 v{96+4*p+i}, v{O0+8*p+2*i}, v{O0+8*p+2*i+1}")
def publish(pol):
    a(f"buffer_store_dwordx2 v[26:27], v21, s[32:35], s53 offen{pol}")
    a("s_mov_b32 s55, s50")
    for p in range(8):
        a(f"buffer_store_dwordx4 v[{96+4*p}:{96+4*p+3}], v20, s[32:35], s55 offen{pol}")
        if p < 7: a("s_add_u32 s55, s55, 65536")
    a(f"""
v_mov_b32 v22, s46
v_mov_b32 v23, s47
s_lshl_b32 s55, s38, 3
s_add_u32 s55, s55, s54
v_mov_b32 v24, 0
s_waitcnt vmcnt(0)
s_mov_b64 exec, 1
buffer_store_dwordx2 v[22:23], v24, s[32:35], s55 offen{pol}
s_mov_b64 exec, -1
""")
if FAST:
    a("s_cmp_eq_u32 s57, 1")
    a("s_cbranch_scc0 L_slow")
    publish("")
    a("s_branch L_pub_done")
    a("L_slow:")
publish(" sc1")
a("L_pub_done:")
stamp()
a(f"""
v_and_b32 v24, 7, v1
v_lshlrev_b32 v24, 3, v24
s_lshl_b32 s50, s37, 3
s_add_u32 s50, s50, s38
s_lshl_b32 s50, s50, 6
s_add_u32 s50, s50, s36
s_lshl_b32 s50, s50, 10
s_mov_b32 s58, 0x40000
L_poll:
buffer_load_dwordx2 v[22:23], v24, s[32:35], s54 offen sc1
s_sub_u32 s58, s58, 1
s_cmp_eq_u32 s58, 0
s_cbranch_scc1 L_poll_done
s_waitcnt vmcnt(0)
v_cmp_eq_u64 vcc, s[46:47], v[22:23]
s_cmp_eq_u64 vcc, exec
s_cbranch_scc0 L_poll
L_poll_done:
s_waitcnt vmcnt(0)
""")
stamp()
ST = 128
for j in range(8):
    a(f"buffer_load_dwordx2 v[{ST+2*j}:{ST+2*j+1}], v21, s[32:35], s52 offen offset:{j*256} sc1")
for j in range(8):
    a(f"buffer_load_dwordx4 v[{96+4*j}:{96+4*j+3}], v20, s[32:35], s50 offen sc1")
    if j < 7: a("s_add_u32 s50, s50, 8192")
a(f"""
s_waitcnt vmcnt(8)
v_max3_f32 v26, v{ST}, v{ST+2}, v{ST+4}
v_max3_f32 v26, v26, v{ST+6}, v{ST+8}
v_max3_f32 v26, v26, v{ST+10}, v{ST+12}
v_max_f32 v26, v26, v{ST+14}
""")
for j in range(8):
    a(f"v_sub_f32 v{ST+2*j}, v{ST+2*j}, v26")
for j in range(8):
    a(f"v_exp_f32 v{ST+2*j}, v{ST+2*j}")
a(f"v_mul_f32 v27, v{ST}, v{ST+1}")
for j in range(1, 8):
    a(f"v_fmac_f32 v27, v{ST+2*j}, v{ST+2*j+1}")
a("v_rcp_f32 v27, v27")
for j in range(8):
    a(f"v_mul_f32 v{ST+2*j}, v{ST+2*j}, v27")
AC = 32
for j in range(8):
    a(f"s_waitcnt vmcnt({7-j})")
    for i in range(4):
        r = 96 + 4 * j + i
        a(f"v_lshlrev_b32 v28, 16, v{r}")
        a(f"v_and_b32 v29, 0xffff0000, v{r}")
        if j == 0:
            a(f"v_mul_f32 v{AC+2*i}, v28, v{ST}")
            a(f"v_mul_f32 v{AC+2*i+1}, v29, v{ST}")
        else:
            a(f"v_fmac_f32 v{AC+2*i}, v28, v{ST+2*j}")
            a(f"v_fmac_f32 v{AC+2*i+1}, v29, v{ST+2*j}")
for i in range(4):
    a(f"v_cvt_pk_bf16_f32 v{44+i}, v{AC+2*i}, v{AC+2*i+1}")
a(f"""
v_and_b32 v20, 31, v1
v_lshrrev_b32 v21, 5, v1
v_lshlrev_b32 v20, 8, v20
v_lshl_add_u32 v20, v21, 3, v20          ; row*256 + 8h
s_lshl_b32 s50, s37, 16
s_add_u32 s50, s50, s42                  ; + wave*8192
s_lshl_b32 s51, s38, 5
s_add_u32 s50, s50, s51
buffer_store_dwordx2 v[44:45], v20, s[28:31], s50 offen
buffer_store_dwordx2 v[46:47], v20, s[28:31], s50 offen offset:16
""")
if STAMPS:
    a("s_waitcnt vmcnt(0)")
    stamp()
    n = nst[0]
    a(f"""
s_cmp_lg_u32 s36, 0
s_cbranch_scc1 L_done
s_add_u32 s14, s14, {200<<20}
s_addc_u32 s15, s15, 0
s_lshl_b32 s3, s2, 6
v_mov_b32 v3, s3
""")
    for i in range(16):
        a(f"v_mov_b32 v{4+i}, s{64+min(i, 2*n-2+(i&1))}")
    a("""
s_mov_b64 exec, 1
global_store_dwordx4 v3, v[4:7], s[14:15]
global_store_dwordx4 v3, v[8:11], s[14:15] offset:16
global_store_dwordx4 v3, v[12:15], s[14:15] offset:32
global_store_dwordx4 v3, v[16:19], s[14:15] offset:48
""")
a("L_done:")
a("s_endpgm")
a.raw(f""".section .rodata,"a"
.p2align 6
.amdhsa_kernel {NAME}
  .amdhsa_next_free_vgpr 256
  .amdhsa_next_free_sgpr 96
  .amdhsa_accum_offset 256
  .amdhsa_group_segment_fixed_size 0
  .amdhsa_kernarg_size 48
  .amdhsa_user_sgpr_count 2
  .amdhsa_user_sgpr_kernarg_segment_ptr 1
  .amdhsa_system_sgpr_workgroup_id_x 1
.end_amdhsa_kernel""")
print(a.text())
print(f"; nops inserted: {a.nops}", file=sys.stderr)
```

```python
import sys, math, struct
from asmgen import Asm
flags = set(sys.argv[1:])
def optv(name, d):
    for f in flags:
        if f.startswith(name + "="): return f.split("=", 1)[1]
    return d
STAMPS = "stamps" in flags
FAST = "nofast" not in flags
KVPOL = "" if "kvplain" in flags else " nt"
OPOL = " nt" if "ont" in flags else ""
LPOL = optv("lpol", "sc1").replace("+", " ")
LPOL = "" if LPOL == "none" else " " + LPOL
QPOL = " nt" if "qnt" in flags else ""
D = int(optv("D", 6))
NF = D + 2
THR = float(optv("thr", 1024.0))
NAME = "standalone__gqa_softmax__near_ridge_kernel"
KB, VB_, QB = 0, 65536, 98304
WS_STATS, WS_FLAGS = 512 << 10, 528 << 10
LA = int(optv("LA", 5))
WSOFF = int(optv("wsoff", 0)) << 20
TOUCH = optv("touch", None)
TPOL = optv("tpol", "").replace("+", " ")
C = (128 ** -0.5) * math.log2(math.e)
def f2u(x): return struct.unpack("<I", struct.pack("<f", x))[0]

a = Asm()
a.raw(f"""; GQA attention (B8 Hq32 Hkv4 Sq32 Sk2048 D128), split-K over 8 workgroups per (b,hkv) pair.
; @launch grid=(256,1,1) block=(512,1,1) lds=163840
.amdgcn_target "amdgcn-amd-amdhsa--gfx950"
.text
.globl {NAME}
.p2align 8
.type {NAME},@function
{NAME}:""")

outst = []
def vm_issue(tag): outst.append(tag)
def vm_wait(tag):
    idxs = [i for i, t in enumerate(outst) if t == tag]
    if not idxs: return
    idx = max(idxs)
    n = len(outst) - 1 - idx
    a(f"s_waitcnt vmcnt({n})")
    del outst[:idx + 1]

nst = [0]
SEL = optv("st", None)
SEL = set(SEL.split(",")) if SEL else None
def stamp(name="d"):
    if not STAMPS: return False
    if SEL is None and name != "d": return False
    if SEL is not None and name not in SEL: return False
    i = nst[0]; nst[0] += 1
    if i >= 8: return False
    a(f"s_memrealtime s[{64+2*i}:{65+2*i}]")
    a("s_waitcnt lgkmcnt(0)")
    return True

QF = 32
O0 = 64
SB = [128, 144]
PB = [160, 168]
FR = 176
TMP = FR + 4 * NF
assert TMP + 8 <= 244
MREF, LSUM, LT0, LT1 = 26, 27, 28, 29

a(f"""
s_cmp_ge_u32 s2, 256
s_cbranch_scc1 L_done
s_load_dwordx8 s[4:11], s[0:1], 0
s_load_dwordx4 s[12:15], s[0:1], 32
s_memrealtime s[52:53]
""")
if STAMPS:
    a("s_memrealtime s[64:65]"); nst[0] = 1
a(f"""
v_lshrrev_b32 v20, 6, v0
v_and_b32 v1, 63, v0
v_readfirstlane_b32 s36, v20
v_lshrrev_b32 v20, 4, v1                 ; r = lane>>4
v_and_b32 v21, 15, v1                    ; ch
v_xor_b32 v22, v21, v20                  ; ch ^ r
v_lshlrev_b32 v22, 4, v22
v_lshl_add_u32 v2, v20, 8, v22           ; pattern g&3==0
v_xor_b32 v3, 64, v2
v_xor_b32 v4, 0x80, v2
v_xor_b32 v5, 0xc0, v2
v_lshlrev_b32 v22, 2, v20
v_xor_b32 v22, v21, v22                  ; ch ^ (r<<2)
v_lshlrev_b32 v22, 4, v22
v_lshl_add_u32 v6, v20, 8, v22
s_and_b32 s37, s2, 7
s_lshr_b32 s38, s2, 3
s_lshl_b32 s37, s37, 2
s_lshr_b32 s39, s38, 3
s_add_u32 s37, s37, s39                  ; pair
s_and_b32 s38, s38, 7                    ; chunk
s_and_b32 s39, s36, 1
s_lshl_b32 s39, s39, 7
v_xor_b32 v7, s39, v2
v_xor_b32 v30, s39, v3
s_and_b32 s39, s36, 3
s_lshl_b32 s39, s39, 6
v_xor_b32 v253, s39, v2
s_lshl_b32 s61, s36, 10                  ; wave*1024
s_lshl_b32 s40, s37, 16                  ; q off
s_lshl_b32 s41, s37, 19
s_lshl_b32 s42, s38, 16
s_add_u32 s41, s41, s42                  ; k/v off
s_lshl_b32 s42, s36, 13                  ; wave*8192
s_lshl_b32 s43, s36, 11
s_mov_b32 s18, 65536
s_mov_b32 s19, 0x20000
s_mov_b32 s22, 65536
s_mov_b32 s23, 0x20000
s_mov_b32 s26, 65536
s_mov_b32 s27, 0x20000
s_add_u32 s49, s42, {QB}
s_add_u32 s45, s42, 4096
s_cmp_ge_u32 s36, 4
s_waitcnt lgkmcnt(0)
s_add_u32 s16, s4, s40
s_addc_u32 s17, s5, 0
s_add_u32 s20, s6, s41
s_addc_u32 s21, s7, 0
s_add_u32 s24, s8, s41
s_addc_u32 s25, s9, 0
s_cmp_ge_u32 s36, 4
s_cbranch_scc1 L_qonly
""")
def dma_tile(kind, t):
    base = (KB if kind == "K" else VB_) + t * 8192
    a(f"s_add_u32 m0, s43, {base}")
    a(f"s_add_u32 s59, s43, {t*8192}")
    if kind == "K":
        a(f"buffer_load_dwordx4 v7, s[20:23], s59 offen{KVPOL} lds")
        a(f"buffer_load_dwordx4 v30, s[20:23], s59 offen offset:1024{KVPOL} lds")
    else:
        a(f"buffer_load_dwordx4 v6, s[24:27], s59 offen{KVPOL} lds")
        a(f"buffer_load_dwordx4 v6, s[24:27], s59 offen offset:1024{KVPOL} lds")
    vm_issue(f"{kind}{t}"); vm_issue(f"{kind}{t}")
def dma_q(track=True):
    for half in range(2):
        a(f"s_add_u32 m0, s49, {4096*half}")
        so = "s45" if half else "s42"
        for g in range(4):
            a(f"buffer_load_dwordx4 v{2+g}, s[16:19], {so} offen offset:{g*1024}{QPOL} lds")
            if track: vm_issue("Q")
def dma_part(kind, t):
    base = (KB if kind == "K" else VB_) + t * 8192
    a(f"s_add_u32 m0, s61, {base}")
    a(f"s_add_u32 s59, s61, {t*8192}")
    if kind == "K": a(f"buffer_load_dwordx4 v253, s[20:23], s59 offen{KVPOL} lds")
    else: a(f"buffer_load_dwordx4 v6, s[24:27], s59 offen{KVPOL} lds")
    vm_issue(f"{kind}{t}")
SEQ = ["K0", "K1"]
for t in range(8):
    SEQ.append(f"V{t}")
    if t + 2 < 8: SEQ.append(f"K{t+2}")
dma_tile("K", 0)
dma_q()
dma_tile("K", 1)
a("s_branch L_issued")
a("L_qonly:")
dma_q(track=False)
a(f"""
s_getreg_b32 s48, hwreg(HW_REG_XCC_ID, 0, 4)
s_lshl_b32 s48, s48, 2
s_lshl_b32 s50, s37, 3
v_mov_b32 v31, s50
s_lshl_b32 s51, 1, s48
v_mov_b32 v254, s51
v_mov_b32 v255, s52
s_lshl_b32 s50, s37, 20
v_mov_b32 v20, s50
v_mov_b32 v21, s40
s_mov_b64 exec, 1
global_load_dword v251, v20, s[14:15]
s_cmp_lg_u32 s36, 4
s_cbranch_scc1 L_noann
global_atomic_add_x2 v31, v[254:255], s[12:13]
s_branch L_ann_done
L_noann:
global_load_dword v252, v21, s[10:11]
L_ann_done:
s_mov_b64 exec, -1
""")
a("L_issued:")
stamp()
a(f"""
s_mov_b32 s28, s10
s_mov_b32 s29, s11
s_mov_b32 s30, 0x200000
s_mov_b32 s31, 0x20000
s_lshl_b32 s50, s37, 20
s_add_u32 s50, s50, {WSOFF}
s_add_u32 s32, s14, s50
s_addc_u32 s33, s15, 0
s_lshl_b32 s62, s38, 6
s_add_u32 s62, s62, s36
s_lshl_b32 s62, s62, 10
v_lshlrev_b32 v250, 4, v1
s_mov_b32 s34, {1<<20}
s_mov_b32 s35, 0x20000
s_mov_b32 s44, {f2u(C):#x}
s_mov_b32 s60, {f2u(THR):#x}
s_getreg_b32 s48, hwreg(HW_REG_XCC_ID, 0, 4)
s_lshl_b32 s48, s48, 2                   ; 4*xcc
s_lshl_b32 s50, s37, 3
v_mov_b32 v31, s50
""")
a(f"""
v_and_b32 v20, 31, v1                    ; row
v_lshrrev_b32 v21, 5, v1                 ; h
v_and_b32 v22, 15, v1
v_xor_b32 v22, v22, v21
v_lshlrev_b32 v22, 4, v22
v_lshl_add_u32 v8, v20, 8, v22           ; kaddr[0]
""")
for s in range(1, 8):
    a(f"v_xor_b32 v{8+s}, {s<<5}, v8")
a(f"""
v_bfe_u32 v20, v1, 2, 2                  ; r
v_and_b32 v22, 3, v1                     ; c
v_bfe_u32 v23, v1, 4, 1                  ; dsub
v_lshl_add_u32 v24, v21, 2, v20          ; 4h + r
v_lshlrev_b32 v24, 8, v24
v_lshl_add_u32 v24, v20, 6, v24
v_lshl_add_u32 v24, v23, 5, v24
v_lshl_add_u32 v24, v22, 3, v24
v_add_u32 v16, {VB_}, v24
v_xor_b32 v17, 64, v16
v_xor_b32 v18, 0x80, v16
v_xor_b32 v19, 0xc0, v16
v_mov_b32 v{LSUM}, 0
""")
for s in range(8):
    a(f"v_add_u32 v{O0+s}, s49, v{8+s}")
vm_wait("K0")
stamp("k0w")
a("s_barrier")
stamp("k0b")
for tag in SEQ[2:LA+1]: dma_part(tag[0], int(tag[1]))
stamp("iss2")
vm_wait("Q")
stamp("qw")
for s in range(8):
    a(f"ds_read_b128 v[{QF+4*s}:{QF+4*s+3}], v{O0+s}")
slots = []
for i in range(9):
    if i < 8: slots += [("QK", i, s, 0) for s in range(8)]
    if i >= 1:
        if i - 1 == 7 and "blkmajor" in flags:
            slots += [("PV", i - 1, mh, blk) for blk in range(4) for mh in range(2)]
        else:
            slots += [("PV", i - 1, mh, blk) for mh in range(2) for blk in range(4)]
NS = len(slots)
lds_q = ["Q"] * 8
def lds_wait(tag):
    idxs = [i for i, t in enumerate(lds_q) if t == tag]
    if not idxs: return
    idx = max(idxs)
    n = len(lds_q) - 1 - idx
    a(f"s_waitcnt lgkmcnt({min(n,15)})")
    del lds_q[:idx + 1]
ready = {"K0"}
late_v_issued = [False]
def ensure_tile(tag):
    if tag in ready: return
    if "xnobar" in flags and tag != "K1":
        ready.add(tag); return
    if tag == "K1":
        lds_wait("Q")
    vm_wait(tag)
    if stamp("w" + tag): lds_q.clear()
    a("s_barrier")
    if stamp("b" + tag): lds_q.clear()
    ready.add(tag)
    n = SEQ.index(tag) if tag in SEQ else 99
    if n + LA < len(SEQ) and SEQ[n + LA] != "x":
        nt_ = SEQ[n + LA]; dma_part(nt_[0], int(nt_[1]))
    if TOUCH is not None and n < 99:
        t0 = int(TOUCH)
        per = max(1, -(-8 // max(1, (16 - t0))))
        j0 = (n - t0) * per
        for j in range(j0, min(j0 + per, 8)):
            if j < 0: continue
            a(f"s_add_u32 s63, s62, {j*8192}")
            a(f"buffer_load_dwordx4 v[244:247], v250, s[32:35], s63 offen{TPOL}")
            vm_issue("touch")
            if j == 0:
                a(f"s_lshl_b32 s63, s36, 11")
                a(f"s_add_u32 s63, s63, {WS_STATS}")
                a(f"buffer_load_dwordx4 v[244:247], v250, s[32:35], s63 offen{TPOL}")
                a(f"buffer_load_dwordx4 v[244:247], v250, s[32:35], s63 offen offset:1024{TPOL}")
                a(f"s_mov_b32 s63, {WS_FLAGS}")
                a(f"buffer_load_dwordx4 v[244:247], v250, s[32:35], s63 offen{TPOL}")
                vm_issue("touch"); vm_issue("touch"); vm_issue("touch")
    if tag == "K1":
        if "xwaitall" in flags:
            for nt_ in SEQ[n + LA + 1:]: dma_part(nt_[0], int(nt_[1]))
            del SEQ[n + LA + 1:]; SEQ.extend(["x"] * 20)
        if "xwaitall" in flags:
            a("s_waitcnt vmcnt(0) lgkmcnt(0)"); a("s_barrier"); lds_q.clear(); outst.clear()
            if "xsolo" in flags:
                a("s_cmp_ge_u32 s36, 4"); a("s_cbranch_scc1 L_done")
            stamp()
            a("s_memtime s[90:91]"); a("s_waitcnt lgkmcnt(0)")
def issue_reads(k):
    ty, t, x, y = slots[k]
    f = FR + 4 * (k % NF)
    if ty == "QK":
        ensure_tile(f"K{t}")
        if "xnolds" in flags and k > 10: return
        a(f"ds_read_b128 v[{f}:{f+3}], v{8+x} offset:{t*8192}")
        lds_q.append(k)
    else:
        ensure_tile(f"V{t}")
        if "xnolds" in flags or "xnov" in flags: return
        for e in range(2):
            a(f"ds_read_b64_tr_b16 v[{f+2*e}:{f+2*e+1}], v{16+y} offset:{t*8192+x*4096+e*2048}")
            lds_q.append(k)

def sm_ops(t, first=False):
    sb, pb = SB[t & 1], PB[t & 1]
    ops = []
    def T(j): return TMP + (j % 4) * 2
    for j in range(8 + 1):
        if j < 8:
            r0, r1 = sb + 2 * j, sb + 2 * j + 1
            ops.append((4, f"v_fma_f32 v{T(j)}, v{r0}, s44, -v{MREF}"))
            ops.append((4, f"v_fma_f32 v{T(j)+1}, v{r1}, s44, -v{MREF}"))
            ops.append((8, f"v_exp_f32 v{T(j)}, v{T(j)}"))
            ops.append((8, f"v_exp_f32 v{T(j)+1}, v{T(j)+1}"))
        if j > 0:
            q = j - 1
            if q == 0:
                pass
            elif q == 1:
                ops.append((4, f"v_add_f32 v{LT0}, v{T(0)}, v{T(1)}"))
                ops.append((4, f"v_add_f32 v{LT1}, v{T(0)+1}, v{T(1)+1}"))
            else:
                ops.append((4, f"v_add_f32 v{LT0}, v{LT0}, v{T(q)}"))
                ops.append((4, f"v_add_f32 v{LT1}, v{LT1}, v{T(q)+1}"))
            ops.append((4, f"v_cvt_pk_bf16_f32 v{pb+q}, v{T(q)}, v{T(q)+1}"))
    ops.append((4, f"v_add_f32 v{LT0}, v{LT0}, v{LT1}"))
    return ops
def max_ops(t, dst):
    sb = SB[t & 1]
    ops = [f"v_max3_f32 v{dst}, v{sb}, v{sb+1}, v{sb+2}", f"v_max3_f32 v{dst+1}, v{sb+3}, v{sb+4}, v{sb+5}"]
    rest = list(range(6, 16))
    for i in range(0, 10, 2):
        m = dst + (i // 2) % 2
        ops.append(f"v_max3_f32 v{m}, v{m}, v{sb+rest[i]}, v{sb+rest[i+1]}")
    ops += [f"v_max_f32 v{dst}, v{dst}, v{dst+1}", f"v_mov_b32 v{dst+1}, v{dst}",
            f"v_permlane32_swap_b32 v{dst}, v{dst+1}", f"v_max_f32 v{dst}, v{dst}, v{dst+1}",
            f"v_mul_f32 v{dst}, s44, v{dst}"]
    return ops

fill = {k: [] for k in range(NS)}
post = {k: [] for k in range(NS)}
idx = {s: k for k, s in enumerate(slots)}
def slots_of(ty, t): return [k for k, s in enumerate(slots) if s[0] == ty and s[1] == t]
for t in range(8):
    ops = sm_ops(t)
    carriers = []
    if t >= 1: carriers += slots_of("PV", t - 1)[2:]
    if t <= 6: carriers += slots_of("QK", t + 1)
    total = sum(c for c, _ in ops)
    if t == 0:
        under = 24 * 8
        head = []
        while sum(c for c, _ in ops) > under: head.append(ops.pop(0))
        post[slots_of("QK", 0)[-1]] = max_ops(0, TMP) + [f"v_mov_b32 v{MREF}, v{TMP}"] + [o for _, o in head]
        total = sum(c for c, _ in ops)
    budget = total / len(carriers) if t != 7 else 24
    acc = 0.0; used = 0
    for ci, k in enumerate(carriers):
        acc += budget
        while ops and (used + ops[0][0] / 2 <= acc or (ci == len(carriers) - 1 and t != 7)):
            c, o = ops.pop(0); used += c; fill[k].append(o)
    lastk = carriers[-1]
    if ops:
        post[lastk] += [o for _, o in ops]
    if t == 0:
        post[lastk] += [f"v_mov_b32 v{LSUM}, v{LT0}"]
    else:
        post[lastk] += [f"v_cmp_lt_f32 vcc, s60, v{LT0}", f"s_cbranch_vccnz L_rare{t}", f"@L_back{t}", f"v_add_f32 v{LSUM}, v{LSUM}, v{LT0}"]
    if t == 7:
        post[lastk] += ["@STATS"]

LATE = set(optv("late", "V7").split(","))
def tile_tag(k): return ("K" if slots[k][0] == "QK" else "V") + str(slots[k][1])
nread = [0]
def reads_upto(k_target, k_now):
    while nread[0] <= min(k_target, NS - 1):
        k = nread[0]
        if tile_tag(k) in LATE and tile_tag(k) not in ready and k > k_now: break
        issue_reads(k); nread[0] += 1
def stats_block():
    a(f"""
v_mov_b32 v{LT1}, v{LSUM}
v_permlane32_swap_b32 v{LSUM}, v{LT1}
v_add_f32 v{LSUM}, v{LSUM}, v{LT1}        ; v26 = m_ref, v27 = l
global_load_dwordx2 v[24:25], v31, s[12:13] sc1
""")
    vm_issue("nonce")
for k in range(NS):
    reads_upto(k + D if k else D, k)
    ty, t, x, y = slots[k]
    if k == 0: lds_wait("Q")
    lds_wait(k)
    f = FR + 4 * (k % NF)
    if ty == "QK":
        sb = SB[t & 1]
        cin = "0" if x == 0 else f"v[{sb}:{sb+15}]"
        a(f"v_mfma_f32_32x32x16_bf16 v[{sb}:{sb+15}], v[{f}:{f+3}], v[{QF+4*x}:{QF+4*x+3}], {cin}")
    else:
        ob = O0 + 16 * y
        pb = PB[t & 1] + 4 * x
        cin = "0" if (t == 0 and x == 0) else f"v[{ob}:{ob+15}]"
        a(f"v_mfma_f32_32x32x16_bf16 v[{ob}:{ob+15}], v[{f}:{f+3}], v[{pb}:{pb+3}], {cin}")
    for o in fill[k]:
        if "xnovalu" not in flags: a(o)
    for o in post[k]:
        if o == "@STATS": stats_block()
        elif o.startswith("@"): a.label(o[1:], flush=False)
        else: a(o)
assert not lds_q
stamp()
if "xwaitall" in flags:
    i = nst[0]; nst[0] += 1
    a("s_memtime s[92:93]"); a("s_waitcnt lgkmcnt(0)")
    a(f"s_sub_u32 s92, s92, s90"); a("s_subb_u32 s93, s93, s91")
    a(f"s_add_u32 s{64+2*i}, s92, s64"); a(f"s_addc_u32 s{65+2*i}, s93, s65")
PK = 128
a(f"""
v_lshlrev_b32 v20, 4, v1                 ; lane*16
v_and_b32 v21, 31, v1
v_lshlrev_b32 v21, 3, v21                ; row*8
s_lshl_b32 s50, s38, 3
s_add_u32 s50, s50, s36
s_lshl_b32 s50, s50, 10
s_lshl_b32 s52, s36, 11
s_add_u32 s52, s52, {WS_STATS}
s_lshl_b32 s53, s38, 8
s_add_u32 s53, s53, s52
s_lshl_b32 s54, s36, 7
s_add_u32 s54, s54, {WS_FLAGS}
""")
a("s_waitcnt vmcnt(0)"); outst.clear()
a(f"""
s_mov_b32 s58, 0x40000
L_nonce:
v_readfirstlane_b32 s46, v24
v_readfirstlane_b32 s47, v25
s_and_b32 s55, s46, 0x0f0f0f0f
s_lshr_b32 s56, s46, 4
s_and_b32 s56, s56, 0x0f0f0f0f
s_add_u32 s55, s55, s56
s_mul_i32 s55, s55, 0x01010101
s_lshr_b32 s55, s55, 24
s_cmp_eq_u32 s55, 8
s_cbranch_scc1 L_nonce_ok
s_sub_u32 s58, s58, 1
s_cmp_eq_u32 s58, 0
s_cbranch_scc1 L_nonce_ok
s_sleep 2
global_load_dwordx2 v[24:25], v31, s[12:13] sc1
s_waitcnt vmcnt(0)
s_branch L_nonce
L_nonce_ok:
s_lshl_b32 s55, 8, s48
s_cmp_eq_u32 s55, s46
s_cselect_b32 s57, 1, 0
s_not_b32 s46, s47
""")
for p in range(8):
    for i in range(4):
        a(f"v_cvt_pk_bf16_f32 v{PK+4*p+i}, v{O0+8*p+2*i}, v{O0+8*p+2*i+1}")
def publish(pol):
    a(f"buffer_store_dwordx2 v[26:27], v21, s[32:35], s53 offen{pol}")
    a("s_mov_b32 s55, s50")
    for p in range(8):
        a(f"buffer_store_dwordx4 v[{PK+4*p}:{PK+4*p+3}], v20, s[32:35], s55 offen{pol}")
        if p < 7: a("s_add_u32 s55, s55, 65536")
    a(f"""
v_mov_b32 v22, s46
v_mov_b32 v23, s47
s_lshl_b32 s55, s38, 3
s_add_u32 s55, s55, s54
v_mov_b32 v24, 0
s_waitcnt vmcnt(0)
s_mov_b64 exec, 1
buffer_store_dwordx2 v[22:23], v24, s[32:35], s55 offen{pol}
s_mov_b64 exec, -1
""")
if FAST:
    a("s_cmp_eq_u32 s57, 1")
    a("s_cbranch_scc0 L_slow")
    publish(optv("spol", "").replace("+", " "))
    a("s_branch L_pub_done")
    a("L_slow:")
publish(optv("spol2", "+sc1").replace("+", " "))
a("L_pub_done:")
stamp()
a(f"""
v_and_b32 v24, 7, v1
v_lshlrev_b32 v24, 3, v24
s_lshl_b32 s50, s38, 6
s_add_u32 s50, s50, s36
s_lshl_b32 s50, s50, 10
s_mov_b32 s58, 0x40000
L_poll:
buffer_load_dwordx2 v[22:23], v24, s[32:35], s54 offen sc1
s_sub_u32 s58, s58, 1
s_cmp_eq_u32 s58, 0
s_cbranch_scc1 L_poll_done
s_waitcnt vmcnt(0)
v_cmp_eq_u64 vcc, s[46:47], v[22:23]
s_cmp_eq_u64 vcc, exec
s_cbranch_scc0 L_poll
L_poll_done:
s_waitcnt vmcnt(0)
""")
stamp()
ST = 160
for j in range(8):
    a(f"buffer_load_dwordx2 v[{ST+2*j}:{ST+2*j+1}], v21, s[32:35], s52 offen offset:{j*256}{LPOL}")
for j in range(8):
    a(f"buffer_load_dwordx4 v[{PK+4*j}:{PK+4*j+3}], v20, s[32:35], s50 offen{LPOL}")
    if j < 7: a("s_add_u32 s50, s50, 8192")
a(f"""
s_waitcnt vmcnt(8)
""")
stamp()
a(f"""
v_max3_f32 v26, v{ST}, v{ST+2}, v{ST+4}
v_max3_f32 v26, v26, v{ST+6}, v{ST+8}
v_max3_f32 v26, v26, v{ST+10}, v{ST+12}
v_max_f32 v26, v26, v{ST+14}
""")
for j in range(8): a(f"v_sub_f32 v{ST+2*j}, v{ST+2*j}, v26")
for j in range(8): a(f"v_exp_f32 v{ST+2*j}, v{ST+2*j}")
a(f"v_mul_f32 v27, v{ST}, v{ST+1}")
for j in range(1, 8): a(f"v_fmac_f32 v27, v{ST+2*j}, v{ST+2*j+1}")
a("v_rcp_f32 v27, v27")
for j in range(8): a(f"v_mul_f32 v{ST+2*j}, v{ST+2*j}, v27")
AC = 32
for j in range(8):
    a(f"s_waitcnt vmcnt({7-j})")
    for i in range(4):
        r = PK + 4 * j + i
        a(f"v_lshlrev_b32 v28, 16, v{r}")
        a(f"v_and_b32 v29, 0xffff0000, v{r}")
        if j == 0:
            a(f"v_mul_f32 v{AC+2*i}, v28, v{ST}")
            a(f"v_mul_f32 v{AC+2*i+1}, v29, v{ST}")
        else:
            a(f"v_fmac_f32 v{AC+2*i}, v28, v{ST+2*j}")
            a(f"v_fmac_f32 v{AC+2*i+1}, v29, v{ST+2*j}")
stamp()
for i in range(4):
    a(f"v_cvt_pk_bf16_f32 v{44+i}, v{AC+2*i}, v{AC+2*i+1}")
a(f"""
v_and_b32 v20, 31, v1
v_lshrrev_b32 v21, 5, v1
v_lshlrev_b32 v20, 8, v20
v_lshl_add_u32 v20, v21, 3, v20          ; row*256 + 8h
s_lshl_b32 s50, s37, 16
s_add_u32 s50, s50, s42                  ; + wave*8192
s_lshl_b32 s51, s38, 5
s_add_u32 s50, s50, s51
buffer_store_dwordx2 v[44:45], v20, s[28:31], s50 offen{OPOL}
buffer_store_dwordx2 v[46:47], v20, s[28:31], s50 offen offset:16{OPOL}
""")
if STAMPS:
    a("s_waitcnt vmcnt(0)")
    stamp()
    n = min(nst[0], 8)
    a(f"""
s_cmp_lg_u32 s36, {optv("stw", 0)}
s_cbranch_scc1 L_done
s_add_u32 s14, s14, {200<<20}
s_addc_u32 s15, s15, 0
s_lshl_b32 s3, s2, 6
v_mov_b32 v3, s3
""")
    for i in range(16):
        a(f"v_mov_b32 v{4+i}, s{64+min(i, 2*n-2+(i&1))}")
    a("""
s_mov_b64 exec, 1
global_store_dwordx4 v3, v[4:7], s[14:15]
global_store_dwordx4 v3, v[8:11], s[14:15] offset:16
global_store_dwordx4 v3, v[12:15], s[14:15] offset:32
global_store_dwordx4 v3, v[16:19], s[14:15] offset:48
""")
a("L_done:")
a("s_endpgm")
for t in range(1, 8):
    a(f"L_rare{t}:")
    a("s_nop 15")
    for o in max_ops(t, TMP): a(o)
    a(f"""
v_max_f32 v{TMP}, v{TMP}, v{MREF}
v_sub_f32 v{TMP+1}, v{MREF}, v{TMP}
v_exp_f32 v{TMP+1}, v{TMP+1}              ; alpha
v_mov_b32 v{MREF}, v{TMP}
v_mul_f32 v{LSUM}, v{LSUM}, v{TMP+1}
""")
    for r in range(64):
        a(f"v_mul_f32 v{O0+r}, v{O0+r}, v{TMP+1}")
    for _, o in sm_ops(t): a(o)
    a.fence()
    a(f"s_branch L_back{t}")
a.raw(f""".section .rodata,"a"
.p2align 6
.amdhsa_kernel {NAME}
  .amdhsa_next_free_vgpr 256
  .amdhsa_next_free_sgpr 96
  .amdhsa_accum_offset 256
  .amdhsa_group_segment_fixed_size 0
  .amdhsa_kernarg_size 48
  .amdhsa_user_sgpr_count 2
  .amdhsa_user_sgpr_kernarg_segment_ptr 1
  .amdhsa_system_sgpr_workgroup_id_x 1
.end_amdhsa_kernel""")
print(a.text())
print(f"; nops inserted: {a.nops}", file=sys.stderr)
```

```python
import sys, math, struct
from asmgen import Asm
flags = set(sys.argv[1:])
def optv(name, d):
    for f in flags:
        if f.startswith(name + "="): return f.split("=", 1)[1]
    return d
R = int(optv("R", 4)); X = 8 // R; G = 8 // R; NBLK = 4 // R
lR = int(math.log2(R)); lX = int(math.log2(X)); lG = lX
assert R in (2, 4)
STAMPS = "stamps" in flags
FAST = "nofast" not in flags
KVPOL = "" if "kvplain" in flags else " nt"
QPOL = " nt" if "qnt" in flags else ""
D = int(optv("D", 6)); NF = D + 2
NB = int(optv("NB", 2 if R == 4 else 3))
THR = float(optv("thr", 1024.0))
TOUCH = "notouch" not in flags
DMA_EVERY = int(optv("de", 1))
PRO = int(optv("pro", 1))
NAME = "standalone__gqa_softmax__near_ridge_kernel"
CH = R * 8192
KB = 0; VB_ = NB * CH; PBUF = 2 * NB * CH; PSLOT = 3072; LDS_END = PBUF + 8 * PSLOT
QBYTES = G * 8192
if QBYTES <= 8 * PSLOT: QB = PBUF; LDS = LDS_END
else: QB = LDS_END; LDS = LDS_END + QBYTES
NR = 2 * NB
blocks = [("QK", 0), ("QK", 1), ("QK", 2), ("PV", 0)]
for s_ in range(3, 8): blocks += [("QK", s_), ("PV", s_ - 2)]
blocks += [("PV", 6), ("PV", 7)]
def chunk_base(kind, s):
    n = blocks.index(("QK" if kind == "K" else "PV", s))
    return (n & 1) * NB * CH + ((n >> 1) % NB) * CH
assert NB * CH <= 65536 and LDS <= 163840
WS_PAIR = 1 << 20
WS_STATS, WS_FLAGS = 512 << 10, 768 << 10
C = (128 ** -0.5) * math.log2(math.e)
def f2u(x): return struct.unpack("<I", struct.pack("<f", x))[0]

a = Asm()
a.raw(f"""; GQA attention (B8 Hq32 Hkv4 Sq32 Sk2048 D128): {256//R} query rows x {256*R} keys per workgroup, {X}-way split-K combine.
; @launch grid=(256,1,1) block=(512,1,1) lds={LDS}
.amdgcn_target "amdgcn-amd-amdhsa--gfx950"
.text
.globl {NAME}
.p2align 8
.type {NAME},@function
{NAME}:""")

outst = []
def vm_issue(tag): outst.append(tag)
def vm_wait(tag):
    idxs = [i for i, t in enumerate(outst) if t == tag]
    if not idxs: return
    idx = max(idxs); n = len(outst) - 1 - idx
    a(f"s_waitcnt vmcnt({n})")
    del outst[:idx + 1]
lds_q = []
def lds_wait(tag):
    idxs = [i for i, t in enumerate(lds_q) if t == tag]
    if not idxs: return
    idx = max(idxs); n = len(lds_q) - 1 - idx
    a(f"s_waitcnt lgkmcnt({min(n,15)})")
    del lds_q[:idx + 1]
def lds_drain():
    if lds_q: a("s_waitcnt lgkmcnt(0)"); lds_q.clear()

nst = [0]
SEL = optv("st", None); SEL = set(SEL.split(",")) if SEL else None
def stamp(name="d"):
    if not STAMPS: return
    if SEL is None and name != "d": return
    if SEL is not None and name not in SEL: return
    i = nst[0]; nst[0] += 1
    if i >= 8: return
    a(f"s_memrealtime s[{64+2*i}:{65+2*i}]")
    a("s_waitcnt lgkmcnt(0)"); lds_q.clear()

KA = 8
VA = 16
PA = 20
T0, T1, T2, T3 = 24, 25, 30, 31
M, LSUM, LT0, LT1 = 26, 27, 28, 29
QF = 32
O0 = 64; NO = 16 * NBLK
SB = [O0 + NO, O0 + NO + 16]
PB = [SB[1] + 16 + 8 * i for i in range(3)]
PO = [PB[2] + 8, PB[2] + 8 + 8 * (R - 1)]
RF = [PO[1] + 8 * (R - 1), PO[1] + 8 * (R - 1) + 2 * (R - 1)]
MR = RF[1] + 2 * (R - 1)
FR = MR + 4
FR += FR % 2
TMP = FR + 4 * NF
MISC = TMP + 8
DK, DV, DBG, LN16, RW8 = MISC, MISC + 1, MISC + 2, MISC + 3, MISC + 4
JUNK = MISC + 6; JUNK += JUNK % 2
RB = JUNK + 4
NV = RB + 2
assert NV <= 256, NV
assert RF[0] % 2 == 0

a(f"""
s_cmp_ge_u32 s2, 256
s_cbranch_scc1 L_done
s_load_dwordx8 s[4:11], s[0:1], 0
s_load_dwordx4 s[12:15], s[0:1], 32
s_memrealtime s[52:53]
""")
if STAMPS:
    a("s_memrealtime s[64:65]"); nst[0] = 1
a(f"""
v_lshrrev_b32 v{T0}, 6, v0
v_and_b32 v1, 63, v0
v_readfirstlane_b32 s36, v{T0}
v_lshrrev_b32 v{T0}, 4, v1               ; r = lane>>4
v_and_b32 v{T1}, 15, v1                  ; ch
v_xor_b32 v{T2}, v{T1}, v{T0}
v_lshlrev_b32 v{T2}, 4, v{T2}
v_lshl_add_u32 v{DK}, v{T0}, 8, v{T2}    ; pattern g&3==0
v_lshlrev_b32 v{T2}, 2, v{T0}
v_xor_b32 v{T2}, v{T1}, v{T2}
v_lshlrev_b32 v{T2}, 4, v{T2}
v_lshl_add_u32 v{DV}, v{T0}, 8, v{T2}
s_and_b32 s37, s2, 7
s_lshr_b32 s38, s2, 3
s_lshl_b32 s37, s37, 2
s_lshr_b32 s39, s38, 3
s_add_u32 s37, s37, s39                  ; pair
s_and_b32 s38, s38, 7                    ; sub
s_lshr_b32 s39, s38, {lX}                ; rowset
s_and_b32 s38, s38, {X-1}
s_and_b32 s40, s36, {G-1}
s_lshr_b32 s41, s36, {lG}                ; role
s_and_b32 s42, s36, 3
s_lshl_b32 s42, s42, 6
v_xor_b32 v{DK}, s42, v{DK}
s_lshl_b32 s42, s37, 16
s_lshl_b32 s43, s39, {16 - lR}
s_add_u32 s42, s42, s43
s_lshl_b32 s43, s37, 19
s_lshl_b32 s45, s38, {16 + lR}
s_add_u32 s43, s43, s45
s_lshl_b32 s61, s36, 10                  ; wave*1024
s_mov_b32 s18, {QBYTES}
s_mov_b32 s19, 0x20000
s_mov_b32 s22, {65536*R}
s_mov_b32 s23, 0x20000
s_mov_b32 s26, {65536*R}
s_mov_b32 s27, 0x20000
s_waitcnt lgkmcnt(0)
s_add_u32 s20, s6, s43
s_addc_u32 s21, s7, 0
s_add_u32 s16, s4, s42
s_addc_u32 s17, s5, 0
s_add_u32 s24, s8, s43
s_addc_u32 s25, s9, 0
""")
def dma(kind, s, r):
    base = chunk_base(kind, s) + r * 8192
    goff = (s * R + r) * 8192
    a(f"s_add_u32 m0, s61, {base}")
    a(f"s_add_u32 s59, s61, {goff}")
    if kind == "K": a(f"buffer_load_dwordx4 v{DK}, s[20:23], s59 offen{KVPOL} lds")
    else: a(f"buffer_load_dwordx4 v{DV}, s[24:27], s59 offen{KVPOL} lds")
    vm_issue(f"{kind}{s}")
for g in range(G):
    a(f"s_add_u32 m0, s61, {QB + g*8192}")
    a(f"s_add_u32 s59, s61, {g*8192}")
    a(f"buffer_load_dwordx4 v{DK}, s[16:19], s59 offen{QPOL} lds")
    vm_issue("K0")
for r in range(R): dma("K", 0, r)
stamp()
def chunk_of(b): return ("K" if b[0] == "QK" else "V") + str(b[1])
pending = [(chunk_of(b)[0], b[1], r) for b in blocks[1:] for r in range(R)]
def free_block(kind, s):
    n = blocks.index(("QK" if kind == "K" else "PV", s))
    return n - NR if n - NR >= 0 else -1
freed = [-1]
def try_dma(maxn):
    n = 0
    while pending and n < maxn:
        kind, s, r = pending[0]
        if free_block(kind, s) > freed[0]: break
        pending.pop(0); dma(kind, s, r); n += 1
a(f"""
s_add_u32 s28, s10, s42
s_addc_u32 s29, s11, 0
s_mov_b32 s30, {QBYTES}
s_mov_b32 s31, 0x20000
s_lshl_b32 s50, s37, 20
s_add_u32 s32, s14, s50
s_addc_u32 s33, s15, 0
s_mov_b32 s34, {WS_PAIR}
s_mov_b32 s35, 0x20000
s_mov_b32 s44, {f2u(C):#x}
s_mov_b32 s60, {f2u(THR):#x}
s_getreg_b32 s48, hwreg(HW_REG_XCC_ID, 0, 4)
s_lshl_b32 s48, s48, 2                   ; 4*xcc
s_lshl_b32 s50, s37, 3
v_mov_b32 v{DBG}, s50
v_and_b32 v{T0}, 31, v1                  ; row
v_lshrrev_b32 v{T1}, 5, v1               ; h
v_and_b32 v{T2}, 15, v1
v_xor_b32 v{T2}, v{T2}, v{T1}
v_lshlrev_b32 v{T2}, 4, v{T2}
v_lshl_add_u32 v{T3}, v{T0}, 8, v{T2}
s_lshl_b32 s45, s41, 13                  ; role*8192
s_lshl_b32 s49, s40, 13
s_add_u32 s49, s49, {QB}
v_lshlrev_b32 v{LN16}, 4, v1
v_lshlrev_b32 v{RW8}, 3, v{T0}
""")
try_dma(R * PRO)
for s in range(8):
    a(f"v_xor_b32 v{T2}, {s<<5}, v{T3}")
    a(f"v_add_u32 v{KA+s}, s45, v{T2}")
    a(f"v_add_u32 v{SB[0]+s}, s49, v{T2}")
a(f"""
v_bfe_u32 v{T0}, v1, 2, 2                ; r
v_and_b32 v{T2}, 3, v1                   ; c
v_bfe_u32 v{T3}, v1, 4, 1                ; dsub
v_lshl_add_u32 v{M}, v{T1}, 2, v{T0}     ; 4h + r
v_lshlrev_b32 v{M}, 8, v{M}
v_lshl_add_u32 v{M}, v{T0}, 6, v{M}
v_lshl_add_u32 v{M}, v{T3}, 5, v{M}
v_lshl_add_u32 v{M}, v{T2}, 3, v{M}
v_add_u32 v{M}, {VB_}, v{M}
s_lshl_b32 s46, s41, {6 + (2 - lR)}
""")
for k in range(R):
    a(f"s_xor_b32 s47, s41, {k}")
    a(f"s_lshl_b32 s50, s47, 13")
    a(f"s_add_u32 s50, s50, s46")
    for i in range(NBLK):
        a(f"s_add_u32 s51, s50, {i << 6}")
        a(f"v_xor_b32 v{VA + k*NBLK + i}, s51, v{M}")
    a(f"s_lshl_b32 s50, s47, {lG}")
    a(f"s_add_u32 s50, s50, s40")
    a(f"s_mul_i32 s50, s50, {PSLOT}")
    a(f"s_add_u32 s50, s50, {PBUF}")
    a(f"v_add_u32 v{PA+k}, s50, v{LN16}")
a(f"""
s_lshl_b32 s50, s39, {2*lX + 3}          ; rs * X*X*8
s_lshl_b32 s51, s38, 3
s_add_u32 s55, s50, s51
s_add_u32 s55, s55, s36
s_lshl_b32 s80, s55, 10
s_lshl_b32 s51, s38, {lX + 3}
s_add_u32 s55, s50, s51
s_add_u32 s55, s55, s36
s_lshl_b32 s81, s55, 10
s_lshl_b32 s50, s39, 3
s_add_u32 s50, s50, s36                  ; rs*8 + w
s_lshl_b32 s82, s50, 11
s_add_u32 s82, s82, {WS_STATS}
s_lshl_b32 s51, s38, 8
s_add_u32 s83, s82, s51
s_lshl_b32 s84, s50, 7
s_add_u32 s84, s84, {WS_FLAGS}
s_lshl_b32 s51, 1, s48
v_mov_b32 v{JUNK}, s51
v_mov_b32 v{JUNK+1}, s52
v_mov_b32 v{LSUM}, 0
""")
vm_wait("K0")
a("s_barrier")
stamp("k0b")
for s in range(8):
    a(f"ds_read_b128 v[{QF+4*s}:{QF+4*s+3}], v{SB[0]+s}")
    lds_q.append("Q")
a(f"""
s_cmp_lg_u32 s36, 4
s_cbranch_scc1 L_noann
s_mov_b64 exec, 1
global_atomic_add_x2 v{DBG}, v[{JUNK}:{JUNK+1}], s[12:13]
s_mov_b64 exec, -1
""")
a.label("L_noann", flush=False)

slots = []; blk_of = []
for n, (ty, t) in enumerate(blocks):
    if ty == "QK": sl = [("QK", t, x, 0, 0) for x in range(8)]
    else: sl = [("PV", t, k, mh, i) for k in range(R) for mh in range(2) for i in range(NBLK)]
    slots += sl; blk_of += [n] * 8
NS = len(slots)
def bslots(ty, t): n = blocks.index((ty, t)); return list(range(8 * n, 8 * n + 8))

def sm_ops(t):
    sb, pb, mr = SB[t & 1], PB[t % 3], MR + t % 3
    ops = []
    def T(j): return TMP + (j % 4) * 2
    for j in range(9):
        if j < 8:
            r0, r1 = sb + 2 * j, sb + 2 * j + 1
            ops.append((4, f"v_fma_f32 v{T(j)}, v{r0}, s44, -v{mr}"))
            ops.append((4, f"v_fma_f32 v{T(j)+1}, v{r1}, s44, -v{mr}"))
            ops.append((8, f"v_exp_f32 v{T(j)}, v{T(j)}"))
            ops.append((8, f"v_exp_f32 v{T(j)+1}, v{T(j)+1}"))
        if j > 0:
            q = j - 1
            if q == 1:
                ops.append((4, f"v_add_f32 v{LT0}, v{T(0)}, v{T(1)}"))
                ops.append((4, f"v_add_f32 v{LT1}, v{T(0)+1}, v{T(1)+1}"))
            elif q > 1:
                ops.append((4, f"v_add_f32 v{LT0}, v{LT0}, v{T(q)}"))
                ops.append((4, f"v_add_f32 v{LT1}, v{LT1}, v{T(q)+1}"))
            ops.append((4, f"v_cvt_pk_bf16_f32 v{pb+q}, v{T(q)}, v{T(q)+1}"))
    ops.append((4, f"v_add_f32 v{LT0}, v{LT0}, v{LT1}"))
    return ops
def max_ops(t, dst):
    sb = SB[t & 1]
    ops = [f"v_max3_f32 v{dst}, v{sb}, v{sb+1}, v{sb+2}", f"v_max3_f32 v{dst+1}, v{sb+3}, v{sb+4}, v{sb+5}"]
    rest = list(range(6, 16))
    for i in range(0, 10, 2):
        m = dst + (i // 2) % 2
        ops.append(f"v_max3_f32 v{m}, v{m}, v{sb+rest[i]}, v{sb+rest[i+1]}")
    ops += [f"v_max_f32 v{dst}, v{dst}, v{dst+1}", f"v_mov_b32 v{dst+1}, v{dst}",
            f"v_permlane32_swap_b32 v{dst}, v{dst+1}", f"v_max_f32 v{dst}, v{dst}, v{dst+1}",
            f"v_mul_f32 v{dst}, s44, v{dst}", f"v_ceil_f32 v{dst}, v{dst}"]
    return ops

fill = {k: [] for k in range(NS)}
post = {k: [] for k in range(NS)}
pre = {k: [] for k in range(NS)}
BPOS = 8 - D
for t in range(8):
    ops = [(4, f"v_mov_b32 v{MR + t % 3}, v{M}")] + sm_ops(t)
    if t == 0: carriers = bslots("QK", 1)[BPOS + 2:]
    elif t == 1: carriers = bslots("QK", 2)[1:]
    elif t <= 6: carriers = bslots("PV", t - 2)[2:] + bslots("QK", t + 1)
    else: carriers = bslots("PV", 5)[2:] + bslots("PV", 6)
    total = sum(c for c, _ in ops)
    budget = min(total / len(carriers), 26)
    acc = 0.0; used = 0
    for ci, k in enumerate(carriers):
        acc += budget
        while ops and used + ops[0][0] / 2 <= acc:
            c, o = ops.pop(0); used += c; fill[k].append(o)
    lastk = carriers[-1]
    post[lastk] += [o for _, o in ops]
    post[lastk] += [("A", t)]
post[bslots("QK", 0)[-1]] = [("INITMAX",)] + post[bslots("QK", 0)[-1]]
pre[bslots("QK", 1)[BPOS + 2]].append(("INITGET",))
for t in range(8): pre[bslots("PV", t)[0]].append(("B", t))

state = dict(p_unbarriered=False, p_written=None, init_written=False)
def barrier(cert, nfree):
    lds_wait("Q"); lds_wait("PR"); lds_wait("PW")
    if cert:
        assert not any(p[0] + str(p[1]) == cert for p in pending), ("not issued", cert)
        vm_wait(cert)
    stamp("w" + str(cert))
    a("s_barrier")
    stamp("b" + str(cert))
    freed[0] = max(freed[0], nfree)
    state["p_unbarriered"] = False
    if state["init_written"]:
        state["init_written"] = False
        for k in range(1, R):
            a(f"ds_read_b32 v{RF[0] + 2*(k-1)}, v{PA+k} offset:2048"); lds_q.append("PR")
        state["p_unbarriered"] = True
    if state["p_written"] is not None:
        t = state["p_written"]; state["p_written"] = None
        for k in range(1, R):
            a(f"ds_read_b64 v[{RF[t&1] + 2*(k-1)}:{RF[t&1] + 2*(k-1) + 1}], v{PA+k} offset:2048"); lds_q.append("PR")
        for k in range(1, R):
            po = PO[t & 1] + 8 * (k - 1)
            a(f"ds_read_b128 v[{po}:{po+3}], v{PA+k}"); lds_q.append("PR")
            a(f"ds_read_b128 v[{po+4}:{po+7}], v{PA+k} offset:1024"); lds_q.append("PR")
        state["p_unbarriered"] = True
def act(o, k):
    if isinstance(o, str): a(o); return
    if o[0] == "INITMAX":
        for x in max_ops(0, TMP): a(x)
        a(f"v_mov_b32 v{M}, v{TMP}")
        a(f"ds_write_b32 v{PA}, v{M} offset:2048"); lds_q.append("PW")
        state["init_written"] = True
    elif o[0] == "INITGET":
        lds_wait("PR")
        for k2 in range(1, R): a(f"v_max_f32 v{M}, v{M}, v{RF[0] + 2*(k2-1)}")
    elif o[0] == "A":
        t = o[1]; mr = MR + t % 3; pb = PB[t % 3]
        a(f"v_cmp_lt_f32 vcc, s60, v{LT0}")
        if t == 7:
            a(f"v_cmp_neq_f32 s[86:87], v{mr}, v{M}")
            a(f"s_or_b64 vcc, vcc, s[86:87]")
        a(f"s_cbranch_vccnz L_rareA{t}")
        a.label(f"L_backA{t}", flush=False)
        a(f"v_add_f32 v{LSUM}, v{LSUM}, v{LT0}")
        if state["p_unbarriered"]:
            barrier(None, freed[0])
        a(f"ds_write_b128 v{PA}, v[{pb}:{pb+3}]"); lds_q.append("PW")
        a(f"ds_write_b128 v{PA}, v[{pb+4}:{pb+7}] offset:1024"); lds_q.append("PW")
        a(f"ds_write_b64 v{PA}, v[{M}:{M+1}] offset:2048"); lds_q.append("PW")
        state["p_written"] = t
    elif o[0] == "B":
        t = o[1]; mr = MR + t % 3; rf = RF[t & 1]
        lds_wait("PR")
        if R == 4:
            a(f"v_max3_f32 v{T0}, v{rf}, v{rf+2}, v{rf+4}")
            a(f"v_min3_f32 v{T1}, v{rf}, v{rf+2}, v{rf+4}")
            a(f"v_max3_f32 v{T0}, v{T0}, v{mr}, v{M}")
            a(f"v_min3_f32 v{T1}, v{T1}, v{mr}, v{M}")
        else:
            a(f"v_max3_f32 v{T0}, v{rf}, v{mr}, v{M}")
            a(f"v_min3_f32 v{T1}, v{rf}, v{mr}, v{M}")
        a(f"v_cmp_neq_f32 vcc, v{T0}, v{T1}")
        a(f"s_cbranch_vccnz L_rareB{t}")
        a.label(f"L_backB{t}", flush=False)

adj = {}
def issue_reads(k):
    ty, t, x, y, z = slots[k]
    f = FR + 4 * (k % NF)
    if ty == "QK":
        cb = chunk_base("K", t)
        if cb >= VB_:
            a(f"v_add_u32 v{PO[0]+x}, {VB_}, v{KA+x}")
            a(f"ds_read_b128 v[{f}:{f+3}], v{PO[0]+x} offset:{cb - VB_}")
        else:
            a(f"ds_read_b128 v[{f}:{f+3}], v{KA+x} offset:{cb}")
        lds_q.append(k)
    else:
        cb = chunk_base("V", t)
        ar = VA + x * NBLK + z
        if cb < VB_:
            if ar not in adj:
                adj[ar] = KA + (ar - VA)
                a(f"v_subrev_u32 v{adj[ar]}, {VB_}, v{ar}")
            ar = adj[ar]; off = cb
        else: off = cb - VB_
        for e in range(2):
            a(f"ds_read_b64_tr_b16 v[{f+2*e}:{f+2*e+1}], v{ar} offset:{off + y*4096 + e*2048}")
            lds_q.append(k)
certified = {0}
nread = [0]
LASTB = len(blocks) - 1
def reads_upto(kt):
    while nread[0] <= min(kt, NS - 1) and blk_of[nread[0]] in certified:
        issue_reads(nread[0]); nread[0] += 1
touch_list = []
if TOUCH:
    touch_list = [("d", j) for j in range(X)] + [("s", 0), ("f", 0), ("o", 0)]
def touch_one():
    if not touch_list: return
    kind, j = touch_list.pop(0)
    if kind == "d":
        a(f"s_add_u32 s63, s81, {j*8192}")
        a(f"buffer_load_dwordx4 v[{JUNK}:{JUNK+3}], v{LN16}, s[32:35], s63 offen")
    elif kind == "s":
        a(f"buffer_load_dwordx4 v[{JUNK}:{JUNK+3}], v{LN16}, s[32:35], s82 offen")
    elif kind == "f":
        a(f"buffer_load_dword v{JUNK}, v{RW8}, s[32:35], s84 offen")
    else:
        return
    vm_issue("touch")

for k in range(NS):
    n = blk_of[k]; pos = k % 8
    ty, t, x, y, z = slots[k]
    if pos == BPOS and n + 1 < LASTB:
        barrier(chunk_of(blocks[n + 1]), n - 1)
        certified.add(n + 1)
    if pos == BPOS and n + 1 == LASTB:
        barrier(None, n - 1)
    if pos == 0 and n == LASTB:
        barrier(chunk_of(blocks[n]), n - 1)
        certified.add(n)
        a(f"global_load_dwordx2 v[{T2}:{T3}], v{DBG}, s[12:13] sc1"); vm_issue("nonce")
    reads_upto(k + D)
    for o in pre[k]: act(o, k)
    if k == 0: lds_wait("Q")
    lds_wait(k)
    f = FR + 4 * (k % NF)
    if ty == "QK":
        sb = SB[t & 1]
        cin = "0" if x == 0 else f"v[{sb}:{sb+15}]"
        a(f"v_mfma_f32_32x32x16_bf16 v[{sb}:{sb+15}], v[{f}:{f+3}], v[{QF+4*x}:{QF+4*x+3}], {cin}")
    else:
        ob = O0 + 16 * z
        pb = (PB[t % 3] if x == 0 else PO[t & 1] + 8 * (x - 1)) + 4 * y
        cin = "0" if (t == 0 and x == 0 and y == 0) else f"v[{ob}:{ob+15}]"
        a(f"v_mfma_f32_32x32x16_bf16 v[{ob}:{ob+15}], v[{f}:{f+3}], v[{pb}:{pb+3}], {cin}")
    if k % DMA_EVERY == 0: try_dma(1)
    if not pending: touch_one()
    for o in fill[k]: a(o)
    for o in post[k]: act(o, k)
    if n == LASTB and pos == 0:
        rf = RF[7 & 1]
        for k2 in range(1, R):
            a(f"v_sub_f32 v{TMP+k2}, v{rf + 2*(k2-1)}, v{M}")
        for k2 in range(1, R):
            a(f"v_exp_f32 v{TMP+k2}, v{TMP+k2}")
        for k2 in range(1, R):
            a(f"v_fmac_f32 v{LSUM}, v{TMP+k2}, v{rf + 2*(k2-1) + 1}")
        a(f"v_mov_b32 v{LT1}, v{LSUM}")
        a(f"v_permlane32_swap_b32 v{LSUM}, v{LT1}")
        a(f"v_add_f32 v{LSUM}, v{LSUM}, v{LT1}")
assert not pending, pending
assert not lds_q, lds_q
stamp()
PK = SB[0]
OWN = PB[0]
a("s_waitcnt vmcnt(0)"); outst.clear()
a(f"""
s_mov_b32 s58, 0x40000
L_nonce:
v_readfirstlane_b32 s46, v{T2}
v_readfirstlane_b32 s47, v{T3}
s_and_b32 s55, s46, 0x0f0f0f0f
s_lshr_b32 s56, s46, 4
s_and_b32 s56, s56, 0x0f0f0f0f
s_add_u32 s55, s55, s56
s_mul_i32 s55, s55, 0x01010101
s_lshr_b32 s55, s55, 24
s_cmp_eq_u32 s55, 8
s_cbranch_scc1 L_nonce_ok
s_sub_u32 s58, s58, 1
s_cmp_eq_u32 s58, 0
s_cbranch_scc1 L_nonce_ok
s_sleep 2
global_load_dwordx2 v[{T2}:{T3}], v{DBG}, s[12:13] sc1
s_waitcnt vmcnt(0)
s_branch L_nonce
L_nonce_ok:
s_lshl_b32 s55, 8, s48
s_cmp_eq_u32 s55, s46
s_cselect_b32 s57, 1, 0
s_not_b32 s46, s47
""")
for p in range(X):
    for i in range(4):
        a(f"v_cvt_pk_bf16_f32 v{PK+4*p+i}, v{O0+8*p+2*i}, v{O0+8*p+2*i+1}")
def publish(pol, tag):
    a(f"buffer_store_dwordx2 v[{M}:{M+1}], v{RW8}, s[32:35], s83 offen{pol}")
    for p in range(X):
        a(f"s_cmp_eq_u32 s38, {p}")
        a(f"s_cbranch_scc1 L_skip{tag}{p}")
        a(f"s_add_u32 s55, s80, {p*X*8192}")
        a(f"buffer_store_dwordx4 v[{PK+4*p}:{PK+4*p+3}], v{LN16}, s[32:35], s55 offen{pol}")
        a.label(f"L_skip{tag}{p}", flush=False)
    a(f"""
v_mov_b32 v{T0}, s46
v_mov_b32 v{T1}, s47
s_lshl_b32 s55, s38, 3
s_add_u32 s55, s55, s84
v_mov_b32 v{T2}, 0
s_waitcnt vmcnt(0)
s_mov_b64 exec, 1
buffer_store_dwordx2 v[{T0}:{T1}], v{T2}, s[32:35], s55 offen{pol}
s_mov_b64 exec, -1
""")
if FAST:
    a("s_cmp_eq_u32 s57, 1")
    a("s_cbranch_scc0 L_slow")
    publish("", "f")
    a("s_branch L_pub_done")
    a("L_slow:")
publish(" sc1", "s")
a("L_pub_done:")
stamp()
for p in range(X):
    a(f"s_cmp_lg_u32 s38, {p}")
    a(f"s_cbranch_scc1 L_own{p}")
    for i in range(8): a(f"v_mov_b32 v{OWN+i}, v{O0+8*p+i}")
    a(f"L_own{p}:")
a(f"""
v_and_b32 v{T2}, {X-1}, v1
v_lshlrev_b32 v{T2}, 3, v{T2}
s_mov_b32 s58, 0x40000
L_poll:
buffer_load_dwordx2 v[{T0}:{T1}], v{T2}, s[32:35], s84 offen sc1
s_sub_u32 s58, s58, 1
s_cmp_eq_u32 s58, 0
s_cbranch_scc1 L_poll_done
s_waitcnt vmcnt(0)
v_cmp_eq_u64 vcc, s[46:47], v[{T0}:{T1}]
s_cmp_eq_u64 vcc, exec
s_cbranch_scc0 L_poll
L_poll_done:
s_waitcnt vmcnt(0)
""")
stamp()
ST = FR
for k in range(1, X):
    a(f"s_xor_b32 s55, s38, {k}")
    a(f"s_lshl_b32 s56, s55, 8")
    a(f"s_add_u32 s56, s56, s82")
    a(f"buffer_load_dwordx2 v[{ST+2*k}:{ST+2*k+1}], v{RW8}, s[32:35], s56 offen sc1")
for k in range(1, X):
    a(f"s_xor_b32 s55, s38, {k}")
    a(f"s_lshl_b32 s56, s55, 13")
    a(f"s_add_u32 s56, s56, s81")
    a(f"buffer_load_dwordx4 v[{PK+4*k}:{PK+4*k+3}], v{LN16}, s[32:35], s56 offen sc1")
a(f"v_mov_b32 v{ST}, v{M}")
a(f"v_mov_b32 v{ST+1}, v{LSUM}")
a(f"s_waitcnt vmcnt({X-1})")
a(f"v_max_f32 v{T0}, v{ST}, v{ST+2}")
for k in range(2, X): a(f"v_max_f32 v{T0}, v{T0}, v{ST+2*k}")
for k in range(X): a(f"v_sub_f32 v{ST+2*k}, v{ST+2*k}, v{T0}")
for k in range(X): a(f"v_exp_f32 v{ST+2*k}, v{ST+2*k}")
a(f"v_mul_f32 v{T1}, v{ST}, v{ST+1}")
for k in range(1, X): a(f"v_fmac_f32 v{T1}, v{ST+2*k}, v{ST+2*k+1}")
a(f"v_rcp_f32 v{T1}, v{T1}")
for k in range(X): a(f"v_mul_f32 v{ST+2*k}, v{ST+2*k}, v{T1}")
for i in range(8): a(f"v_mul_f32 v{OWN+i}, v{OWN+i}, v{ST}")
for k in range(1, X):
    a(f"s_waitcnt vmcnt({X-1-k})")
    for i in range(4):
        r = PK + 4 * k + i
        a(f"v_lshlrev_b32 v{T2}, 16, v{r}")
        a(f"v_and_b32 v{T3}, 0xffff0000, v{r}")
        a(f"v_fmac_f32 v{OWN+2*i}, v{T2}, v{ST+2*k}")
        a(f"v_fmac_f32 v{OWN+2*i+1}, v{T3}, v{ST+2*k}")
stamp()
for i in range(4):
    a(f"v_cvt_pk_bf16_f32 v{PK+i}, v{OWN+2*i}, v{OWN+2*i+1}")
a(f"""
v_and_b32 v{T0}, 31, v1
v_lshrrev_b32 v{T1}, 5, v1
v_lshlrev_b32 v{T0}, 8, v{T0}
v_lshl_add_u32 v{T0}, v{T1}, 3, v{T0}
s_lshl_b32 s50, s40, 13
s_lshl_b32 s51, s41, {8 - lR}
s_add_u32 s50, s50, s51
s_lshl_b32 s51, s38, 5
s_add_u32 s50, s50, s51
buffer_store_dwordx2 v[{PK}:{PK+1}], v{T0}, s[28:31], s50 offen
buffer_store_dwordx2 v[{PK+2}:{PK+3}], v{T0}, s[28:31], s50 offen offset:16
""")
if STAMPS:
    a("s_waitcnt vmcnt(0)")
    stamp()
    n = min(nst[0], 8)
    a(f"""
s_cmp_lg_u32 s36, {optv("stw", 0)}
s_cbranch_scc1 L_done
s_add_u32 s14, s14, {200<<20}
s_addc_u32 s15, s15, 0
s_lshl_b32 s3, s2, 6
v_mov_b32 v3, s3
""")
    for i in range(16):
        a(f"v_mov_b32 v{4+i}, s{64+min(i, 2*n-2+(i&1))}")
    a("""
s_mov_b64 exec, 1
global_store_dwordx4 v3, v[4:7], s[14:15]
global_store_dwordx4 v3, v[8:11], s[14:15] offset:16
global_store_dwordx4 v3, v[12:15], s[14:15] offset:32
global_store_dwordx4 v3, v[16:19], s[14:15] offset:48
""")
a("L_done:")
a("s_endpgm")
def rescale_O(alpha, t_first_written):
    for r in range(NO): a(f"v_mul_f32 v{O0+r}, v{O0+r}, v{alpha}")
for t in range(8):
    a(f"L_rareA{t}:")
    a("s_nop 15")
    for o in max_ops(t, TMP): a(o)
    a(f"""
v_max_f32 v{TMP}, v{TMP}, v{M}
v_sub_f32 v{TMP+1}, v{M}, v{TMP}
v_exp_f32 v{TMP+1}, v{TMP+1}
v_mov_b32 v{M}, v{TMP}
v_mov_b32 v{MR + t % 3}, v{TMP}
v_mul_f32 v{LSUM}, v{LSUM}, v{TMP+1}
""")
    if t >= 2: rescale_O(TMP + 1, 0)
    for _, o in sm_ops(t): a(o)
    a.fence()
    a(f"s_branch L_backA{t}")
for t in range(8):
    a(f"L_rareB{t}:")
    a("s_nop 15")
    a(f"""
v_sub_f32 v{T1}, v{M}, v{T0}
v_exp_f32 v{T1}, v{T1}
v_mov_b32 v{M}, v{T0}
v_mul_f32 v{LSUM}, v{LSUM}, v{T1}
""")
    if t >= 1: rescale_O(T1, 0)
    for k in range(R):
        ref = MR + t % 3 if k == 0 else RF[t & 1] + 2 * (k - 1)
        pb = PB[t % 3] if k == 0 else PO[t & 1] + 8 * (k - 1)
        a(f"v_sub_f32 v{T1}, v{ref}, v{T0}")
        a(f"v_exp_f32 v{T1}, v{T1}")
        for i in range(8):
            a(f"v_lshlrev_b32 v{RB}, 16, v{pb+i}")
            a(f"v_and_b32 v{RB+1}, 0xffff0000, v{pb+i}")
            a(f"v_mul_f32 v{RB}, v{RB}, v{T1}")
            a(f"v_mul_f32 v{RB+1}, v{RB+1}, v{T1}")
            a(f"v_cvt_pk_bf16_f32 v{pb+i}, v{RB}, v{RB+1}")
    a.fence()
    a(f"s_branch L_backB{t}")
a.raw(f""".section .rodata,"a"
.p2align 6
.amdhsa_kernel {NAME}
  .amdhsa_next_free_vgpr {NV}
  .amdhsa_next_free_sgpr 96
  .amdhsa_accum_offset {(NV + 3) // 4 * 4}
  .amdhsa_group_segment_fixed_size 0
  .amdhsa_kernarg_size 48
  .amdhsa_user_sgpr_count 2
  .amdhsa_user_sgpr_kernarg_segment_ptr 1
  .amdhsa_system_sgpr_workgroup_id_x 1
.end_amdhsa_kernel""")
print(a.text())
print(f"; NV={NV} LDS={LDS} nops inserted: {a.nops}", file=sys.stderr)
```

```python
import sys, math, struct
from asmgen import Asm
flags = set(sys.argv[1:])
def optv(name, d):
    for f in flags:
        if f.startswith(name + "="): return f.split("=", 1)[1]
    return d
KS = int(optv("KS", 2)); X = 8 // KS; G = 8 // KS; NBLK = 4 // KS
lK = int(math.log2(KS)); lX = int(math.log2(X)); lG = lX
assert KS in (2, 4)
STAMPS = "stamps" in flags
FAST = "nofast" not in flags
KVPOL = "" if "kvplain" in flags else " nt"
QPOL = " nt" if "qnt" in flags else ""
D = int(optv("D", 6)); NF = D + 2
NB = int(optv("NB", 2 if KS == 4 else 4))
THR = float(optv("thr", 1024.0))
TOUCH = "notouch" not in flags
DRATE = int(optv("drate", 2))
TOUCH_AT = int(optv("touchat", 0))
PRO = int(optv("pro", 1 if KS == 4 else 2))
DPOS = [int(x) for x in optv("dpos", "2,3,4,5,6,7,0,1").split(",")]
NAME = "standalone__gqa_softmax__near_ridge_kernel"
CH = KS * 8192
REG = NB * CH
QBYTES = G * 8192
QB = 2 * REG; LDS = QB + QBYTES
assert REG <= 65536 and LDS <= 163840
NR = 2 * NB
blocks = [("QK", 0), ("QK", 1)]
for t_ in range(7):
    blocks.append(("PV", t_))
    if t_ + 2 <= 7: blocks.append(("QK", t_ + 2))
blocks.append(("PV", 7))
def bidx(kind, s): return blocks.index(("QK" if kind == "K" else "PV", s))
def chunk_base(kind, s):
    n = bidx(kind, s)
    return (n & 1) * REG + ((n >> 1) % NB) * CH
WS_PAIR = 1 << 20
WS_STATS, WS_FLAGS = 512 << 10, 768 << 10
C = (128 ** -0.5) * math.log2(math.e)
def f2u(x): return struct.unpack("<I", struct.pack("<f", x))[0]

a = Asm()
a.raw(f"""; GQA attention (B8 Hq32 Hkv4 Sq32 Sk2048 D128): {256//KS} query rows x {256*KS} keys per workgroup, {X}-way split-K combine.
; @launch grid=(256,1,1) block=(512,1,1) lds={LDS}
.amdgcn_target "amdgcn-amd-amdhsa--gfx950"
.text
.globl {NAME}
.p2align 8
.type {NAME},@function
{NAME}:""")

outst = []
def vm_issue(tag): outst.append(tag)
def vm_wait(tag):
    idxs = [i for i, t in enumerate(outst) if t == tag]
    if not idxs: return
    idx = max(idxs); n = len(outst) - 1 - idx
    a(f"s_waitcnt vmcnt({n})")
    del outst[:idx + 1]
lds_q = []
def lds_wait(tag):
    idxs = [i for i, t in enumerate(lds_q) if t == tag]
    if not idxs: return
    idx = max(idxs); n = len(lds_q) - 1 - idx
    a(f"s_waitcnt lgkmcnt({min(n,15)})")
    del lds_q[:idx + 1]

nst = [0]
SEL = optv("st", None); SEL = set(SEL.split(",")) if SEL else None
def stamp(name="d"):
    if not STAMPS: return
    if SEL is None and name != "d": return
    if SEL is not None and name not in SEL: return
    i = nst[0]; nst[0] += 1
    if i >= 8: return
    a(f"s_memrealtime s[{64+2*i}:{65+2*i}]")
    a("s_waitcnt lgkmcnt(0)"); lds_q.clear()

KA = 8; VA = 16
T0, T1, T2, T3 = 24, 25, 30, 31
M, LSUM, LT0, LT1 = 26, 27, 28, 29
RA = 20
QF = 32; O0 = 64
SB = [128, 144]; PB = [160, 168]
FR = 176; TMP = FR + 4 * NF; MISC = TMP + 8
DK, DV, DBG, LN16, RW8, DK2 = MISC, MISC + 1, MISC + 2, MISC + 3, MISC + 4, MISC + 5
JUNK = MISC + 6; JUNK += JUNK % 2
NV = JUNK + 4
assert NV <= 256

a(f"""
s_cmp_ge_u32 s2, 256
s_cbranch_scc1 L_done
s_load_dwordx8 s[4:11], s[0:1], 0
s_load_dwordx4 s[12:15], s[0:1], 32
s_memrealtime s[52:53]
""")
if STAMPS:
    a("s_memrealtime s[64:65]"); nst[0] = 1
a(f"""
v_lshrrev_b32 v{T0}, 6, v0
v_and_b32 v1, 63, v0
v_readfirstlane_b32 s36, v{T0}
v_lshrrev_b32 v{T0}, 4, v1
v_and_b32 v{T1}, 15, v1
v_xor_b32 v{T2}, v{T1}, v{T0}
v_lshlrev_b32 v{T2}, 4, v{T2}
v_lshl_add_u32 v{DK}, v{T0}, 8, v{T2}
v_lshlrev_b32 v{T2}, 2, v{T0}
v_xor_b32 v{T2}, v{T1}, v{T2}
v_lshlrev_b32 v{T2}, 4, v{T2}
v_lshl_add_u32 v{DV}, v{T0}, 8, v{T2}
s_and_b32 s37, s2, 7
s_lshr_b32 s38, s2, 3
s_lshl_b32 s37, s37, 2
s_lshr_b32 s39, s38, 3
s_add_u32 s37, s37, s39                  ; pair
s_and_b32 s38, s38, 7
s_lshr_b32 s39, s38, {lX}                ; rowset
s_and_b32 s38, s38, {X-1}
s_and_b32 s40, s36, {G-1}
s_lshr_b32 s41, s36, {lG}
s_and_b32 s42, s36, 1
s_lshl_b32 s42, s42, 7
v_xor_b32 v{DK}, s42, v{DK}
v_xor_b32 v{DK2}, 64, v{DK}              ; group 2w'+1
s_lshl_b32 s42, s37, 16
s_lshl_b32 s43, s39, {16 - lK}
s_add_u32 s42, s42, s43
s_lshl_b32 s43, s37, 19
s_lshl_b32 s45, s38, {16 + lK}
s_add_u32 s43, s43, s45
s_and_b32 s61, s36, 3
s_lshl_b32 s61, s61, 11
s_mov_b32 s18, {QBYTES}
s_mov_b32 s19, 0x20000
s_mov_b32 s22, {65536*KS}
s_mov_b32 s23, 0x20000
s_mov_b32 s26, {65536*KS}
s_mov_b32 s27, 0x20000
s_waitcnt lgkmcnt(0)
s_add_u32 s20, s6, s43
s_addc_u32 s21, s7, 0
s_add_u32 s16, s4, s42
s_addc_u32 s17, s5, 0
s_add_u32 s24, s8, s43
s_addc_u32 s25, s9, 0
""")
INLOOP = [False]
LCMP = "s_cmp_lt_u32 s36, 4" if "loadlo" not in flags else "s_cmp_ge_u32 s36, 4"
lab = [0]
def loader_begin():
    lab[0] += 1
    a(LCMP); a(f"s_cbranch_scc1 L_nl{lab[0]}")
def loader_end():
    a.label(f"L_nl{lab[0]}", flush=False)
def dma(kind, s, r):
    if "xnodma" in flags and INLOOP[0]: return
    base = chunk_base(kind, s) + r * 8192
    goff = (s * KS + r) * 8192
    a(f"s_add_u32 m0, s61, {base}")
    a(f"s_add_u32 s59, s61, {goff}")
    if kind == "K":
        a(f"buffer_load_dwordx4 v{DK}, s[20:23], s59 offen{KVPOL} lds")
        a(f"buffer_load_dwordx4 v{DK2}, s[20:23], s59 offen offset:1024{KVPOL} lds")
    else:
        a(f"buffer_load_dwordx4 v{DV}, s[24:27], s59 offen{KVPOL} lds")
        a(f"buffer_load_dwordx4 v{DV}, s[24:27], s59 offen offset:1024{KVPOL} lds")
    vm_issue(f"{kind}{s}"); vm_issue(f"{kind}{s}")
loader_begin()
for r in range(KS): dma("K", 0, r)
for g in range(G):
    a(f"s_add_u32 m0, s61, {QB + g*8192}")
    a(f"s_add_u32 s59, s61, {g*8192}")
    a(f"buffer_load_dwordx4 v{DK}, s[16:19], s59 offen{QPOL} lds")
    a(f"buffer_load_dwordx4 v{DK2}, s[16:19], s59 offen offset:1024{QPOL} lds")
    vm_issue("K0"); vm_issue("K0")
loader_end()
stamp()
def chunk_of(b): return ("K" if b[0] == "QK" else "V") + str(b[1])
pending = [(chunk_of(b)[0], b[1], r) for b in blocks[1:] for r in range(KS)]
def free_block(kind, s):
    n = bidx(kind, s); return n - NR if n - NR >= 0 else -1
freed = [-1]
def try_dma(maxn):
    n = 0
    opened = False
    while pending and n < maxn:
        kind, s, r = pending[0]
        if free_block(kind, s) > freed[0]: break
        if not opened: loader_begin(); opened = True
        pending.pop(0); dma(kind, s, r); n += 1
    if opened: loader_end()
    return n
a(f"""
s_add_u32 s28, s10, s42
s_addc_u32 s29, s11, 0
s_mov_b32 s30, {QBYTES}
s_mov_b32 s31, 0x20000
s_lshl_b32 s50, s37, 20
s_add_u32 s32, s14, s50
s_addc_u32 s33, s15, 0
s_mov_b32 s34, {WS_PAIR}
s_mov_b32 s35, 0x20000
s_mov_b32 s44, {f2u(C):#x}
s_mov_b32 s60, {f2u(THR):#x}
s_getreg_b32 s48, hwreg(HW_REG_XCC_ID, 0, 4)
s_lshl_b32 s48, s48, 2
s_lshl_b32 s50, s37, 3
v_mov_b32 v{DBG}, s50
v_and_b32 v{T0}, 31, v1
v_lshrrev_b32 v{T1}, 5, v1
v_and_b32 v{T2}, 15, v1
v_xor_b32 v{T2}, v{T2}, v{T1}
v_lshlrev_b32 v{T2}, 4, v{T2}
v_lshl_add_u32 v{T3}, v{T0}, 8, v{T2}
s_lshl_b32 s45, s41, 13                  ; h*8192
s_add_u32 s46, s45, {REG}
s_lshl_b32 s49, s40, 13
s_add_u32 s49, s49, {QB}
v_lshlrev_b32 v{LN16}, 4, v1
v_lshlrev_b32 v{RW8}, 3, v{T0}
""")
for s in range(8):
    a(f"v_xor_b32 v{T2}, {s<<5}, v{T3}")
    a(f"v_add_u32 v{KA+s}, s46, v{T2}")
    a(f"v_add_u32 v{O0+s}, s49, v{T2}")
    a(f"v_add_u32 v{O0+8+s}, s45, v{T2}")
a(f"""
v_bfe_u32 v{T0}, v1, 2, 2
v_and_b32 v{T2}, 3, v1
v_bfe_u32 v{T3}, v1, 4, 1
v_lshl_add_u32 v{M}, v{T1}, 2, v{T0}
v_lshlrev_b32 v{M}, 8, v{M}
v_lshl_add_u32 v{M}, v{T0}, 6, v{M}
v_lshl_add_u32 v{M}, v{T3}, 5, v{M}
v_lshl_add_u32 v{M}, v{T2}, 3, v{M}
v_add_u32 v{VA}, s45, v{M}
v_xor_b32 v{VA+1}, 64, v{VA}
v_xor_b32 v{VA+2}, 0x80, v{VA}
v_xor_b32 v{VA+3}, 0xc0, v{VA}
s_lshl_b32 s50, s39, {2*lX + 3}
s_lshl_b32 s51, s38, 3
s_add_u32 s55, s50, s51
s_add_u32 s55, s55, s36
s_lshl_b32 s80, s55, 10
s_lshl_b32 s51, s38, {lX + 3}
s_add_u32 s55, s50, s51
s_add_u32 s55, s55, s36
s_lshl_b32 s81, s55, 10
s_lshl_b32 s50, s39, 3
s_add_u32 s50, s50, s36
s_lshl_b32 s82, s50, 11
s_add_u32 s82, s82, {WS_STATS}
s_lshl_b32 s51, s38, 8
s_add_u32 s83, s82, s51
s_lshl_b32 s84, s50, 7
s_add_u32 s84, s84, {WS_FLAGS}
s_lshl_b32 s51, 1, s48
v_mov_b32 v{JUNK}, s51
v_mov_b32 v{JUNK+1}, s52
""")
try_dma(KS * PRO)
vm_wait("K0")
a("s_barrier")
stamp("k0b")
if "cyc" in flags: a("s_memtime s[90:91]"); a("s_waitcnt lgkmcnt(0)")
for s in range(8):
    a(f"ds_read_b128 v[{QF+4*s}:{QF+4*s+3}], v{O0+s}")
    lds_q.append("Q")
a(f"""
s_cmp_lg_u32 s36, {0 if "loadlo" not in flags else 4}
s_cbranch_scc1 L_noann
s_mov_b64 exec, 1
global_atomic_add_x2 v{DBG}, v[{JUNK}:{JUNK+1}], s[12:13]
s_mov_b64 exec, -1
""")
a.label("L_noann", flush=False)
INLOOP[0] = True

slots = []; blk_of = []
for n, (ty, t) in enumerate(blocks):
    if ty == "QK": sl = [("QK", t, x, 0) for x in range(8)]
    else: sl = [("PV", t, mh, blk) for mh in range(2) for blk in range(4)]
    slots += sl; blk_of += [n] * 8
NS = len(slots)
def bslots(ty, t): n = blocks.index((ty, t)); return list(range(8 * n, 8 * n + 8))
def sm_ops(t):
    sb, pb = SB[t & 1], PB[t & 1]
    ops = []
    def T(j): return TMP + (j % 4) * 2
    for j in range(9):
        if j < 8:
            r0, r1 = sb + 2 * j, sb + 2 * j + 1
            ops.append((4, f"v_fma_f32 v{T(j)}, v{r0}, s44, -v{M}"))
            ops.append((4, f"v_fma_f32 v{T(j)+1}, v{r1}, s44, -v{M}"))
            ops.append((8, f"v_exp_f32 v{T(j)}, v{T(j)}"))
            ops.append((8, f"v_exp_f32 v{T(j)+1}, v{T(j)+1}"))
        if j > 0:
            q = j - 1
            if q == 1:
                ops.append((4, f"v_add_f32 v{LT0}, v{T(0)}, v{T(1)}"))
                ops.append((4, f"v_add_f32 v{LT1}, v{T(0)+1}, v{T(1)+1}"))
            elif q > 1:
                ops.append((4, f"v_add_f32 v{LT0}, v{LT0}, v{T(q)}"))
                ops.append((4, f"v_add_f32 v{LT1}, v{LT1}, v{T(q)+1}"))
            ops.append((4, f"v_cvt_pk_bf16_f32 v{pb+q}, v{T(q)}, v{T(q)+1}"))
    ops.append((4, f"v_add_f32 v{LT0}, v{LT0}, v{LT1}"))
    return ops
def max_ops(t, dst):
    sb = SB[t & 1]
    ops = [f"v_max3_f32 v{dst}, v{sb}, v{sb+1}, v{sb+2}", f"v_max3_f32 v{dst+1}, v{sb+3}, v{sb+4}, v{sb+5}"]
    rest = list(range(6, 16))
    for i in range(0, 10, 2):
        m = dst + (i // 2) % 2
        ops.append(f"v_max3_f32 v{m}, v{m}, v{sb+rest[i]}, v{sb+rest[i+1]}")
    ops += [f"v_max_f32 v{dst}, v{dst}, v{dst+1}", f"v_mov_b32 v{dst+1}, v{dst}",
            f"v_permlane32_swap_b32 v{dst}, v{dst+1}", f"v_max_f32 v{dst}, v{dst}, v{dst+1}",
            f"v_mul_f32 v{dst}, s44, v{dst}"]
    return ops
fill = {k: [] for k in range(NS)}
post = {k: [] for k in range(NS)}
BPOS = 8 - D
for t in range(8):
    ops = sm_ops(t)
    if t == 0:
        ops = [(4, o) for o in max_ops(0, T0)] + [(4, f"v_mov_b32 v{M}, v{T0}")] + ops
        carriers = bslots("QK", 1)[2:]
    elif t <= 6: carriers = bslots("PV", t - 1)[2:] + bslots("QK", t + 1)
    else: carriers = bslots("PV", 6)[2:]
    total = sum(c for c, _ in ops)
    budget = min(total / len(carriers), 26)
    acc = 0.0; used = 0
    for ci, k in enumerate(carriers):
        acc += budget
        while ops and used + ops[0][0] / 2 <= acc:
            c, o = ops.pop(0); used += c; fill[k].append(o)
    lastk = carriers[-1]
    post[lastk] += [o for _, o in ops]
    post[lastk] += [("A", t)]
RED = 0
def barrier(cert, nfree):
    lds_wait("Q")
    if cert:
        assert not any(p[0] + str(p[1]) == cert for p in pending), ("not issued", cert)
        vm_wait(cert)
    stamp("w" + str(cert))
    if "xnobar" not in flags: a("s_barrier")
    stamp("b" + str(cert))
    freed[0] = max(freed[0], nfree)
def act(o):
    if isinstance(o, str): a(o); return
    t = o[1]
    if t == 0: a(f"v_mov_b32 v{LSUM}, v{LT0}"); return
    a(f"v_cmp_lt_f32 vcc, s60, v{LT0}")
    if "xnorare" not in flags: a(f"s_cbranch_vccnz L_rareA{t}")
    a.label(f"L_backA{t}", flush=False)
    a(f"v_add_f32 v{LSUM}, v{LSUM}, v{LT0}")
adj = {}
def issue_reads(k):
    ty, t, x, y = slots[k]
    f = FR + 4 * (k % NF)
    if ty == "QK":
        cb = chunk_base("K", t)
        if cb < REG: a(f"ds_read_b128 v[{f}:{f+3}], v{O0+8+x} offset:{cb}")
        else: a(f"ds_read_b128 v[{f}:{f+3}], v{KA+x} offset:{cb - REG}")
        lds_q.append(k)
    else:
        cb = chunk_base("V", t)
        ar = VA + y; off = cb
        if cb >= REG:
            if ar not in adj:
                adj[ar] = KA + y
                a(f"v_add_u32 v{adj[ar]}, {REG}, v{ar}")
            ar = adj[ar]; off = cb - REG
        for e in range(2):
            a(f"ds_read_b64_tr_b16 v[{f+2*e}:{f+2*e+1}], v{ar} offset:{off + x*4096 + e*2048}")
            lds_q.append(k)
certified = {0}
nread = [0]
LASTB = len(blocks) - 1
LATE = "nolate" not in flags
def reads_upto(kt):
    while nread[0] <= min(kt, NS - 1) and blk_of[nread[0]] in certified:
        issue_reads(nread[0]); nread[0] += 1
touch_list = ([("d", j) for j in range(1, X)] + [("s", 0), ("f", 0)]) if TOUCH else []
def touch_one():
    if not touch_list: return
    kind, j = touch_list.pop(0)
    if kind == "d":
        a(f"s_xor_b32 s63, s38, {j}")
        a(f"s_lshl_b32 s63, s63, 13")
        a(f"s_add_u32 s63, s63, s81")
        a(f"buffer_load_dwordx4 v[{JUNK}:{JUNK+3}], v{LN16}, s[32:35], s63 offen")
    elif kind == "s":
        a(f"buffer_load_dwordx4 v[{JUNK}:{JUNK+3}], v{LN16}, s[32:35], s82 offen")
    else:
        a(f"buffer_load_dword v{JUNK}, v{RW8}, s[32:35], s84 offen")
    vm_issue("touch")
for k in range(NS):
    n = blk_of[k]; pos = k % 8
    ty, t, x, y = slots[k]
    if pos == BPOS and (n + 1 < LASTB or (n + 1 == LASTB and not LATE)):
        barrier(chunk_of(blocks[n + 1]), n - 1); certified.add(n + 1)
        reads_upto(k + D)
        had = bool(pending)
        try_dma(KS * DRATE)
        if not had and n >= TOUCH_AT:
            while touch_list: touch_one()
    if pos == 0 and n == LASTB:
        if LATE: barrier(chunk_of(blocks[n]), n - 1); certified.add(n)
        a(f"global_load_dwordx2 v[{T2}:{T3}], v{DBG}, s[12:13] sc1"); vm_issue("nonce")
    reads_upto(k + D)
    if k == 0: lds_wait("Q")
    lds_wait(k)
    f = FR + 4 * (k % NF)
    if ty == "QK":
        sb = SB[t & 1]
        cin = "0" if x == 0 else f"v[{sb}:{sb+15}]"
        a(f"v_mfma_f32_32x32x16_bf16 v[{sb}:{sb+15}], v[{f}:{f+3}], v[{QF+4*x}:{QF+4*x+3}], {cin}")
    else:
        ob = O0 + 16 * y; pb = PB[t & 1] + 4 * x
        cin = "0" if (t == 0 and x == 0) else f"v[{ob}:{ob+15}]"
        a(f"v_mfma_f32_32x32x16_bf16 v[{ob}:{ob+15}], v[{f}:{f+3}], v[{pb}:{pb+3}], {cin}")
    for o in fill[k]:
        if "xnovalu" not in flags: a(o)
    for o in post[k]: act(o)
    if n == LASTB and pos == 0:
        a(f"v_mov_b32 v{LT1}, v{LSUM}")
        a(f"v_permlane32_swap_b32 v{LSUM}, v{LT1}")
        a(f"v_add_f32 v{LSUM}, v{LSUM}, v{LT1}")
        SLOT = NBLK * 2048 + 1024
        for kk in range(1, KS):
            a(f"s_xor_b32 s47, s41, {kk}")
            a(f"s_lshl_b32 s50, s47, {lG}")
            a(f"s_add_u32 s50, s50, s40")
            a(f"s_mul_i32 s50, s50, {SLOT*(KS-1)}")
            a(f"s_add_u32 s50, s50, {RED + (kk-1)*SLOT}")
            a(f"v_add_u32 v{RA+kk}, s50, v{LN16}")
        a(f"s_mul_i32 s50, s36, {SLOT*(KS-1)}")
        a(f"s_add_u32 s50, s50, {RED}")
        a(f"v_add_u32 v{RA}, s50, v{LN16}")
        assert 8 * SLOT * (KS - 1) <= chunk_base("V", 7)
        if not LATE: pass
assert not pending, pending
assert not lds_q, lds_q
stamp()
if "cyc" in flags:
    i = nst[0]; nst[0] += 1
    a("s_memtime s[92:93]"); a("s_waitcnt lgkmcnt(0)")
    a(f"s_sub_u32 s92, s92, s90"); a("s_subb_u32 s93, s93, s91")
    a(f"s_add_u32 s{64+2*i}, s92, s64"); a(f"s_addc_u32 s{65+2*i}, s93, s65")
assert LATE
PKD = SB[0]
KEEP = QF
NK = 16 * NBLK
for hh in range(KS):
    a(f"s_cmp_lg_u32 s41, {hh}")
    a(f"s_cbranch_scc1 L_red{hh}")
    for kk in range(1, KS):
        hp = hh ^ kk
        for i in range(NK // 2):
            a(f"v_cvt_pk_bf16_f32 v{PKD + (kk-1)*(NK//2) + i}, v{O0 + hp*NK + 2*i}, v{O0 + hp*NK + 2*i + 1}")
        for j in range(NK // 8):
            r = PKD + (kk - 1) * (NK // 2) + 4 * j
            a(f"ds_write_b128 v{RA+kk}, v[{r}:{r+3}] offset:{j*1024}")
        a(f"ds_write_b64 v{RA+kk}, v[{M}:{M+1}] offset:{NBLK*2048}")
    for i in range(NK): a(f"v_mov_b32 v{KEEP+i}, v{O0 + hh*NK + i}")
    a(f"L_red{hh}:")
a("s_waitcnt lgkmcnt(0)")
a("s_barrier")
SLOT = NBLK * 2048 + 1024
ST = FR
for kk in range(1, KS):
    a(f"ds_read_b64 v[{ST+2*kk}:{ST+2*kk+1}], v{RA} offset:{(kk-1)*SLOT + NBLK*2048}")
for kk in range(1, KS):
    for j in range(NK // 8):
        r = PKD + (kk - 1) * (NK // 2) + 4 * j
        a(f"ds_read_b128 v[{r}:{r+3}], v{RA} offset:{(kk-1)*SLOT + j*1024}")
nrd = (KS - 1) * (NK // 8)
a(f"s_waitcnt lgkmcnt({nrd})")
a(f"v_max_f32 v{T0}, v{M}, v{ST+2}")
for kk in range(2, KS): a(f"v_max_f32 v{T0}, v{T0}, v{ST+2*kk}")
a(f"v_sub_f32 v{ST}, v{M}, v{T0}")
for kk in range(1, KS): a(f"v_sub_f32 v{ST+2*kk}, v{ST+2*kk}, v{T0}")
for kk in range(KS): a(f"v_exp_f32 v{ST+2*kk}, v{ST+2*kk}")
a(f"v_mov_b32 v{M}, v{T0}")
a(f"v_mul_f32 v{LSUM}, v{LSUM}, v{ST}")
for kk in range(1, KS): a(f"v_fmac_f32 v{LSUM}, v{ST+2*kk}, v{ST+2*kk+1}")
for i in range(NK): a(f"v_mul_f32 v{KEEP+i}, v{KEEP+i}, v{ST}")
cnt = 0
for kk in range(1, KS):
    for j in range(NK // 8):
        cnt += 1
        a(f"s_waitcnt lgkmcnt({nrd - cnt})")
        for i in range(4):
            r = PKD + (kk - 1) * (NK // 2) + 4 * j + i
            a(f"v_lshlrev_b32 v{T0}, 16, v{r}")
            a(f"v_and_b32 v{T1}, 0xffff0000, v{r}")
            a(f"v_fmac_f32 v{KEEP + 8*j + 2*i}, v{T0}, v{ST+2*kk}")
            a(f"v_fmac_f32 v{KEEP + 8*j + 2*i + 1}, v{T1}, v{ST+2*kk}")
stamp()
PK = O0; OWN = O0 + 32
a("s_waitcnt vmcnt(0)"); outst.clear()
a(f"""
s_mov_b32 s58, 0x40000
L_nonce:
v_readfirstlane_b32 s46, v{T2}
v_readfirstlane_b32 s47, v{T3}
s_and_b32 s55, s46, 0x0f0f0f0f
s_lshr_b32 s56, s46, 4
s_and_b32 s56, s56, 0x0f0f0f0f
s_add_u32 s55, s55, s56
s_mul_i32 s55, s55, 0x01010101
s_lshr_b32 s55, s55, 24
s_cmp_eq_u32 s55, 8
s_cbranch_scc1 L_nonce_ok
s_sub_u32 s58, s58, 1
s_cmp_eq_u32 s58, 0
s_cbranch_scc1 L_nonce_ok
s_sleep 2
global_load_dwordx2 v[{T2}:{T3}], v{DBG}, s[12:13] sc1
s_waitcnt vmcnt(0)
s_branch L_nonce
L_nonce_ok:
s_lshl_b32 s55, 8, s48
s_cmp_eq_u32 s55, s46
s_cselect_b32 s57, 1, 0
s_not_b32 s46, s47
""")
for p in range(X):
    for i in range(4):
        a(f"v_cvt_pk_bf16_f32 v{PK+4*p+i}, v{KEEP+8*p+2*i}, v{KEEP+8*p+2*i+1}")
def publish(pol, tag):
    a(f"buffer_store_dwordx2 v[{M}:{M+1}], v{RW8}, s[32:35], s83 offen{pol}")
    for p in range(X):
        a(f"s_cmp_eq_u32 s38, {p}")
        a(f"s_cbranch_scc1 L_skip{tag}{p}")
        a(f"s_add_u32 s55, s80, {p*X*8192}")
        a(f"buffer_store_dwordx4 v[{PK+4*p}:{PK+4*p+3}], v{LN16}, s[32:35], s55 offen{pol}")
        a.label(f"L_skip{tag}{p}", flush=False)
    a(f"""
v_mov_b32 v{T0}, s46
v_mov_b32 v{T1}, s47
s_lshl_b32 s55, s38, 3
s_add_u32 s55, s55, s84
v_mov_b32 v{T2}, 0
s_waitcnt vmcnt(0)
s_mov_b64 exec, 1
buffer_store_dwordx2 v[{T0}:{T1}], v{T2}, s[32:35], s55 offen{pol}
s_mov_b64 exec, -1
""")
if FAST:
    a("s_cmp_eq_u32 s57, 1")
    a("s_cbranch_scc0 L_slow")
    publish("", "f")
    a("s_branch L_pub_done")
    a("L_slow:")
publish(" sc1", "s")
a("L_pub_done:")
stamp()
for p in range(X):
    a(f"s_cmp_lg_u32 s38, {p}")
    a(f"s_cbranch_scc1 L_own{p}")
    for i in range(8): a(f"v_mov_b32 v{OWN+i}, v{KEEP+8*p+i}")
    a(f"L_own{p}:")
a(f"""
v_and_b32 v{T2}, {X-1}, v1
v_lshlrev_b32 v{T2}, 3, v{T2}
s_mov_b32 s58, 0x40000
L_poll:
buffer_load_dwordx2 v[{T0}:{T1}], v{T2}, s[32:35], s84 offen sc1
s_sub_u32 s58, s58, 1
s_cmp_eq_u32 s58, 0
s_cbranch_scc1 L_poll_done
s_waitcnt vmcnt(0)
v_cmp_eq_u64 vcc, s[46:47], v[{T0}:{T1}]
s_cmp_eq_u64 vcc, exec
s_cbranch_scc0 L_poll
L_poll_done:
s_waitcnt vmcnt(0)
""")
stamp()
for k in range(1, X):
    a(f"s_xor_b32 s55, s38, {k}")
    a(f"s_lshl_b32 s56, s55, 8")
    a(f"s_add_u32 s56, s56, s82")
    a(f"buffer_load_dwordx2 v[{ST+2*k}:{ST+2*k+1}], v{RW8}, s[32:35], s56 offen sc1")
for k in range(1, X):
    a(f"s_xor_b32 s55, s38, {k}")
    a(f"s_lshl_b32 s56, s55, 13")
    a(f"s_add_u32 s56, s56, s81")
    a(f"buffer_load_dwordx4 v[{PK+4*k}:{PK+4*k+3}], v{LN16}, s[32:35], s56 offen sc1")
a(f"v_mov_b32 v{ST}, v{M}")
a(f"v_mov_b32 v{ST+1}, v{LSUM}")
a(f"s_waitcnt vmcnt({X-1})")
a(f"v_max_f32 v{T0}, v{ST}, v{ST+2}")
for k in range(2, X): a(f"v_max_f32 v{T0}, v{T0}, v{ST+2*k}")
for k in range(X): a(f"v_sub_f32 v{ST+2*k}, v{ST+2*k}, v{T0}")
for k in range(X): a(f"v_exp_f32 v{ST+2*k}, v{ST+2*k}")
a(f"v_mul_f32 v{T1}, v{ST}, v{ST+1}")
for k in range(1, X): a(f"v_fmac_f32 v{T1}, v{ST+2*k}, v{ST+2*k+1}")
a(f"v_rcp_f32 v{T1}, v{T1}")
for k in range(X): a(f"v_mul_f32 v{ST+2*k}, v{ST+2*k}, v{T1}")
for i in range(8): a(f"v_mul_f32 v{OWN+i}, v{OWN+i}, v{ST}")
for k in range(1, X):
    a(f"s_waitcnt vmcnt({X-1-k})")
    for i in range(4):
        r = PK + 4 * k + i
        a(f"v_lshlrev_b32 v{T2}, 16, v{r}")
        a(f"v_and_b32 v{T3}, 0xffff0000, v{r}")
        a(f"v_fmac_f32 v{OWN+2*i}, v{T2}, v{ST+2*k}")
        a(f"v_fmac_f32 v{OWN+2*i+1}, v{T3}, v{ST+2*k}")
for i in range(4):
    a(f"v_cvt_pk_bf16_f32 v{PK+i}, v{OWN+2*i}, v{OWN+2*i+1}")
a(f"""
v_and_b32 v{T0}, 31, v1
v_lshrrev_b32 v{T1}, 5, v1
v_lshlrev_b32 v{T0}, 8, v{T0}
v_lshl_add_u32 v{T0}, v{T1}, 3, v{T0}
s_lshl_b32 s50, s40, 13
s_lshl_b32 s51, s41, {8 - lK}
s_add_u32 s50, s50, s51
s_lshl_b32 s51, s38, 5
s_add_u32 s50, s50, s51
buffer_store_dwordx2 v[{PK}:{PK+1}], v{T0}, s[28:31], s50 offen
buffer_store_dwordx2 v[{PK+2}:{PK+3}], v{T0}, s[28:31], s50 offen offset:16
""")
if STAMPS:
    stamp()
    n = min(nst[0], 8)
    a(f"""
s_cmp_lg_u32 s36, {optv("stw", 0)}
s_cbranch_scc1 L_done
s_add_u32 s14, s14, {200<<20}
s_addc_u32 s15, s15, 0
s_lshl_b32 s3, s2, 6
v_mov_b32 v3, s3
""")
    for i in range(16):
        a(f"v_mov_b32 v{4+i}, s{64+min(i, 2*n-2+(i&1))}")
    a("""
s_mov_b64 exec, 1
global_store_dwordx4 v3, v[4:7], s[14:15]
global_store_dwordx4 v3, v[8:11], s[14:15] offset:16
global_store_dwordx4 v3, v[12:15], s[14:15] offset:32
global_store_dwordx4 v3, v[16:19], s[14:15] offset:48
""")
a("L_done:")
a("s_endpgm")
for t in range(1, 8):
    a(f"L_rareA{t}:")
    a("s_nop 15")
    for o in max_ops(t, TMP): a(o)
    a(f"""
v_max_f32 v{TMP}, v{TMP}, v{M}
v_sub_f32 v{TMP+1}, v{M}, v{TMP}
v_exp_f32 v{TMP+1}, v{TMP+1}
v_mov_b32 v{M}, v{TMP}
v_mul_f32 v{LSUM}, v{LSUM}, v{TMP+1}
""")
    for r in range(64): a(f"v_mul_f32 v{O0+r}, v{O0+r}, v{TMP+1}")
    for _, o in sm_ops(t): a(o)
    a.fence()
    a(f"s_branch L_backA{t}")
a.raw(f""".section .rodata,"a"
.p2align 6
.amdhsa_kernel {NAME}
  .amdhsa_next_free_vgpr {NV}
  .amdhsa_next_free_sgpr 96
  .amdhsa_accum_offset {(NV + 3) // 4 * 4}
  .amdhsa_group_segment_fixed_size 0
  .amdhsa_kernarg_size 48
  .amdhsa_user_sgpr_count 2
  .amdhsa_user_sgpr_kernarg_segment_ptr 1
  .amdhsa_system_sgpr_workgroup_id_x 1
.end_amdhsa_kernel""")
print(a.text())
print(f"; NV={NV} LDS={LDS} nops inserted: {a.nops}", file=sys.stderr)
```

```python
import sys, math, struct
from asmgen import Asm
flags = set(sys.argv[1:])
def optv(name, d):
    for f in flags:
        if f.startswith(name + "="): return f.split("=", 1)[1]
    return d
KS = int(optv("KS", 2)); X = 8 // KS; G = 8 // KS; NBLK = 4 // KS
lK = int(math.log2(KS)); lX = int(math.log2(X)); lG = lX
assert KS in (2, 4)
STAMPS = "stamps" in flags
FAST = "nofast" not in flags
KVPOL = "" if "kvplain" in flags else " nt"
QPOL = " nt" if "qnt" in flags else ""
TPOL = " nt" if "tnt" in flags else ""
D = int(optv("D", 4)); NF = D + 2
NB = int(optv("NB", 2 if KS == 4 else 4))
THR = float(optv("thr", 1024.0))
PRO = int(optv("pro", 1 if KS == 4 else 2))
DRATE = int(optv("drate", 2))
TB = int(optv("tb", 1)); TC = int(optv("tc", 4)); TA_ = int(optv("ta", TC + 2)); TT = int(optv("tt", 13))
SPIN = 0x40000
assert TA_ <= 13
NAME = "standalone__gqa_softmax__near_ridge_kernel"
CH = KS * 8192
REG = NB * CH
QBYTES = G * 8192
QB = 2 * REG; LDS = QB + QBYTES
assert REG <= 65536 and LDS <= 163840
NR = 2 * NB
blocks = [("QK", 0), ("QK", 1)]
for t_ in range(7):
    blocks.append(("PV", t_))
    if t_ + 2 <= 7: blocks.append(("QK", t_ + 2))
blocks.append(("PV", 7))
def bidx(kind, s): return blocks.index(("QK" if kind == "K" else "PV", s))
def chunk_base(kind, s):
    n = bidx(kind, s)
    return (n & 1) * REG + ((n >> 1) % NB) * CH
WS_PAIR = 1 << 18
C = (128 ** -0.5) * math.log2(math.e)
def f2u(x): return struct.unpack("<I", struct.pack("<f", x))[0]

a = Asm()
a.raw(f"""; GQA attention (B8 Hq32 Hkv4 Sq32 Sk2048 D128): {256//KS} query rows x {256*KS} keys per workgroup,
; @launch grid=(256,1,1) block=(512,1,1) lds={LDS}
.amdgcn_target "amdgcn-amd-amdhsa--gfx950"
.text
.globl {NAME}
.p2align 8
.type {NAME},@function
{NAME}:""")

outst = []
def vm_issue(tag): outst.append(tag)
def vm_wait(tag):
    idxs = [i for i, t in enumerate(outst) if t == tag]
    if not idxs: return
    idx = max(idxs); n = len(outst) - 1 - idx
    a(f"s_waitcnt vmcnt({n})")
    del outst[:idx + 1]
lds_q = []
def lds_wait(tag):
    idxs = [i for i, t in enumerate(lds_q) if t == tag]
    if not idxs: return
    idx = max(idxs); n = len(lds_q) - 1 - idx
    a(f"s_waitcnt lgkmcnt({min(n,15)})")
    del lds_q[:idx + 1]

nst = [0]
SEL = optv("st", None); SEL = set(SEL.split(",")) if SEL else None
def stamp(name="d"):
    if not STAMPS: return
    if SEL is None and name != "d": return
    if SEL is not None and name not in SEL: return
    i = nst[0]; nst[0] += 1
    if i >= 8: return
    a(f"s_memrealtime s[{64+2*i}:{65+2*i}]")
    a("s_waitcnt lgkmcnt(0)"); lds_q.clear()

KA = 8; VA = 16
RA = 20
T0, T1, T2, T3 = 24, 25, 30, 31
M, LSUM, LT0, LT1 = 26, 27, 28, 29
QF = 32; O0 = 64
SB = [128, 144]; PB = [160, 168]
FR = 176; TMP = FR + 4 * NF; MISC = TMP + 8
DK, DV, DBG, LN16, RW8, DK2 = MISC, MISC + 1, MISC + 2, MISC + 3, MISC + 4, MISC + 5
JUNK = MISC + 6; JUNK += JUNK % 2
ONES = JUNK + 4
PS = ONES + 4
GW = PS + 2 * (KS - 1)
NV = GW + 2
assert NV <= 256
NK = 16 * NBLK
SLOT = NBLK * 2048
STATB = QB
assert 8 * (KS - 1) * 1024 <= QBYTES or KS == 4
if KS == 4: STATB = QB
if KS == 4: LDS = max(LDS, QB + 8 * 3 * 1024)

a(f"""
s_cmp_ge_u32 s2, 256
s_cbranch_scc1 L_done
s_load_dwordx8 s[4:11], s[0:1], 0
s_load_dwordx4 s[12:15], s[0:1], 32
""")
if STAMPS:
    a("s_memrealtime s[64:65]"); nst[0] = 1
a(f"""
v_lshrrev_b32 v{T0}, 6, v0
v_and_b32 v1, 63, v0
v_readfirstlane_b32 s36, v{T0}
v_lshrrev_b32 v{T0}, 4, v1
v_and_b32 v{T1}, 15, v1
v_xor_b32 v{T2}, v{T1}, v{T0}
v_lshlrev_b32 v{T2}, 4, v{T2}
v_lshl_add_u32 v{DK}, v{T0}, 8, v{T2}
v_lshlrev_b32 v{T2}, 2, v{T0}
v_xor_b32 v{T2}, v{T1}, v{T2}
v_lshlrev_b32 v{T2}, 4, v{T2}
v_lshl_add_u32 v{DV}, v{T0}, 8, v{T2}
s_and_b32 s37, s2, 7
s_lshr_b32 s62, s2, 3
s_lshl_b32 s37, s37, 2
s_lshr_b32 s39, s62, 3
s_add_u32 s37, s37, s39                  ; pair
s_and_b32 s62, s62, 7                    ; sub
s_lshr_b32 s39, s62, {lX}                ; rowset
s_and_b32 s38, s62, {X-1}
s_and_b32 s40, s36, {G-1}
s_lshr_b32 s41, s36, {lG}
s_and_b32 s42, s36, 1
s_lshl_b32 s42, s42, 7
v_xor_b32 v{DK}, s42, v{DK}
v_xor_b32 v{DK2}, 64, v{DK}
s_lshl_b32 s42, s37, 16
s_lshl_b32 s43, s39, {16 - lK}
s_add_u32 s42, s42, s43
s_lshl_b32 s43, s37, 19
s_lshl_b32 s45, s38, {16 + lK}
s_add_u32 s43, s43, s45
s_and_b32 s61, s36, 3
s_lshl_b32 s61, s61, 11
s_mov_b32 s18, {QBYTES}
s_mov_b32 s19, 0x20000
s_mov_b32 s22, {65536*KS}
s_mov_b32 s23, 0x20000
s_mov_b32 s26, {65536*KS}
s_mov_b32 s27, 0x20000
s_waitcnt lgkmcnt(0)
s_add_u32 s20, s6, s43
s_addc_u32 s21, s7, 0
s_add_u32 s16, s4, s42
s_addc_u32 s17, s5, 0
s_add_u32 s24, s8, s43
s_addc_u32 s25, s9, 0
""")
INLOOP = [False]
lab = [0]
def only(cond):
    lab[0] += 1
    a({"loader": "s_cmp_lt_u32 s36, 4", "helper": "s_cmp_ge_u32 s36, 4", "w0": "s_cmp_lg_u32 s36, 0"}[cond])
    a(f"s_cbranch_scc1 L_nl{lab[0]}")
def end_only(): a.label(f"L_nl{lab[0]}", flush=False)
def dma(kind, s, r):
    if "xnodma" in flags and INLOOP[0]: return
    base = chunk_base(kind, s) + r * 8192
    goff = (s * KS + r) * 8192
    a(f"s_add_u32 m0, s61, {base}")
    a(f"s_add_u32 s59, s61, {goff}")
    if kind == "K":
        a(f"buffer_load_dwordx4 v{DK}, s[20:23], s59 offen{KVPOL} lds")
        a(f"buffer_load_dwordx4 v{DK2}, s[20:23], s59 offen offset:1024{KVPOL} lds")
    else:
        a(f"buffer_load_dwordx4 v{DV}, s[24:27], s59 offen{KVPOL} lds")
        a(f"buffer_load_dwordx4 v{DV}, s[24:27], s59 offen offset:1024{KVPOL} lds")
    vm_issue(f"{kind}{s}"); vm_issue(f"{kind}{s}")
only("loader")
for r in range(KS): dma("K", 0, r)
for g in range(G):
    a(f"s_add_u32 m0, s61, {QB + g*8192}")
    a(f"s_add_u32 s59, s61, {g*8192}")
    a(f"buffer_load_dwordx4 v{DK}, s[16:19], s59 offen{QPOL} lds")
    a(f"buffer_load_dwordx4 v{DK2}, s[16:19], s59 offen offset:1024{QPOL} lds")
    vm_issue("K0"); vm_issue("K0")
end_only()
stamp()
def chunk_of(b): return ("K" if b[0] == "QK" else "V") + str(b[1])
pending = [(chunk_of(b)[0], b[1], r) for b in blocks[1:] for r in range(KS)]
def free_block(kind, s):
    n = bidx(kind, s); return n - NR if n - NR >= 0 else -1
freed = [-1]
def try_dma(maxn):
    n = 0; opened = False
    while pending and n < maxn:
        kind, s, r = pending[0]
        if free_block(kind, s) > freed[0]: break
        if not opened: only("loader"); opened = True
        pending.pop(0); dma(kind, s, r); n += 1
    if opened: end_only()
    return n
a(f"""
s_add_u32 s28, s10, s42
s_addc_u32 s29, s11, 0
s_mov_b32 s30, {QBYTES}
s_mov_b32 s31, 0x20000
s_lshl_b32 s50, s37, 18
s_add_u32 s32, s14, s50
s_addc_u32 s33, s15, 0
s_mov_b32 s34, {WS_PAIR}
s_mov_b32 s35, 0x20000
s_mov_b32 s44, {f2u(C):#x}
s_mov_b32 s60, {f2u(THR):#x}
s_getreg_b32 s48, hwreg(HW_REG_XCC_ID, 0, 4)
s_lshl_b32 s48, s48, 2
s_lshl_b32 s50, s37, 3
v_mov_b32 v{DBG}, s50
s_lshl_b32 s51, 1, s48
v_mov_b32 v{JUNK}, s51
s_lshl_b32 s48, 8, s48
""")
only("w0")
a(f"""
s_mov_b64 exec, 1
global_atomic_add v{DBG}, v{JUNK}, s[12:13]
s_mov_b64 exec, -1
""")
end_only()
a(f"""
v_and_b32 v{T0}, 31, v1
v_lshrrev_b32 v{T1}, 5, v1
v_and_b32 v{T2}, 15, v1
v_xor_b32 v{T2}, v{T2}, v{T1}
v_lshlrev_b32 v{T2}, 4, v{T2}
v_lshl_add_u32 v{T3}, v{T0}, 8, v{T2}
s_lshl_b32 s45, s41, 13                  ; h*8192
s_add_u32 s46, s45, {REG}
s_lshl_b32 s49, s40, 13
s_add_u32 s49, s49, {QB}
v_lshlrev_b32 v{LN16}, 4, v1
v_lshlrev_b32 v{RW8}, 3, v{T0}
v_mov_b32 v{ONES}, -1
v_mov_b32 v{ONES+1}, -1
v_mov_b32 v{ONES+2}, -1
v_mov_b32 v{ONES+3}, -1
""")
for s in range(8):
    a(f"v_xor_b32 v{T2}, {s<<5}, v{T3}")
    a(f"v_add_u32 v{KA+s}, s46, v{T2}")
    a(f"v_add_u32 v{O0+s}, s49, v{T2}")
    a(f"v_add_u32 v{O0+8+s}, s45, v{T2}")
if KS == 2:
    a("s_lshl_b32 s50, s41, 7"); a("s_lshl_b32 s51, s38, 5"); a("s_or_b32 s50, s50, s51")
else:
    a("s_lshl_b32 s50, s41, 6"); a("s_lshl_b32 s51, s38, 5"); a("s_or_b32 s50, s50, s51")
a(f"""
v_bfe_u32 v{T0}, v1, 2, 2
v_and_b32 v{T2}, 3, v1
v_bfe_u32 v{T3}, v1, 4, 1
v_lshl_add_u32 v{M}, v{T1}, 2, v{T0}
v_lshlrev_b32 v{M}, 8, v{M}
v_lshl_add_u32 v{M}, v{T0}, 6, v{M}
v_lshl_add_u32 v{M}, v{T3}, 5, v{M}
v_lshl_add_u32 v{M}, v{T2}, 3, v{M}
v_xor_b32 v{M}, s50, v{M}
v_add_u32 v{VA}, s45, v{M}
v_xor_b32 v{VA+1}, 64, v{VA}
v_xor_b32 v{VA+2}, 0x80, v{VA}
v_xor_b32 v{VA+3}, 0xc0, v{VA}
s_lshl_b32 s80, s62, 3
s_add_u32 s80, s80, s36
s_lshl_b32 s80, s80, 12
""")
a(f"s_mul_i32 s50, s36, {KS-1}")
a(f"v_mov_b32 v{RA}, s50")
for kk in range(1, KS):
    a(f"s_xor_b32 s47, s41, {kk}")
    a(f"s_lshl_b32 s50, s47, {lG}")
    a(f"s_add_u32 s50, s50, s40")
    a(f"s_mul_i32 s50, s50, {KS-1}")
    a(f"s_add_u32 s{84+kk}, s50, {kk-1}")
assert 8 * SLOT * (KS - 1) <= chunk_base("V", 7)
SA = TMP
def stat_addrs():
    pass
try_dma(KS * PRO)
a(f"s_mul_i32 s50, s36, {(KS-1)*1024}")
a(f"s_add_u32 s50, s50, {STATB}")
a(f"v_add_u32 v{RA}, s50, v{LN16}")
for kk in range(1, KS):
    a(f"s_lshl_b32 s50, s{84+kk}, 10")
    a(f"s_add_u32 s50, s50, {STATB}")
    a(f"v_add_u32 v{RA+kk}, s50, v{LN16}")
vm_wait("K0")
a("s_barrier")
stamp("k0b")
if "cyc" in flags: a("s_memtime s[94:95]"); a("s_waitcnt lgkmcnt(0)")
for s in range(8):
    a(f"ds_read_b128 v[{QF+4*s}:{QF+4*s+3}], v{O0+s}")
    lds_q.append("Q")
INLOOP[0] = True

slots = []; blk_of = []
for n, (ty, t) in enumerate(blocks):
    if ty == "QK": sl = [("QK", t, x, 0) for x in range(8)]
    elif t == 7: sl = [("PV", t, mh, blk) for blk in (3, 2, 1, 0) for mh in range(2)]
    else: sl = [("PV", t, mh, blk) for mh in range(2) for blk in range(4)]
    slots += sl; blk_of += [n] * 8
NS = len(slots)
def bslots(ty, t): n = blocks.index((ty, t)); return list(range(8 * n, 8 * n + 8))
def sm_ops(t):
    sb, pb = SB[t & 1], PB[t & 1]
    ops = []
    def T(j): return TMP + (j % 4) * 2
    for j in range(9):
        if j < 8:
            r0, r1 = sb + 2 * j, sb + 2 * j + 1
            ops.append((4, f"v_fma_f32 v{T(j)}, v{r0}, s44, -v{M}"))
            ops.append((4, f"v_fma_f32 v{T(j)+1}, v{r1}, s44, -v{M}"))
            ops.append((8, f"v_exp_f32 v{T(j)}, v{T(j)}"))
            ops.append((8, f"v_exp_f32 v{T(j)+1}, v{T(j)+1}"))
        if j > 0:
            q = j - 1
            if q == 1:
                ops.append((4, f"v_add_f32 v{LT0}, v{T(0)}, v{T(1)}"))
                ops.append((4, f"v_add_f32 v{LT1}, v{T(0)+1}, v{T(1)+1}"))
            elif q > 1:
                ops.append((4, f"v_add_f32 v{LT0}, v{LT0}, v{T(q)}"))
                ops.append((4, f"v_add_f32 v{LT1}, v{LT1}, v{T(q)+1}"))
            ops.append((4, f"v_cvt_pk_bf16_f32 v{pb+q}, v{T(q)}, v{T(q)+1}"))
    ops.append((4, f"v_add_f32 v{LT0}, v{LT0}, v{LT1}"))
    return ops
def max_ops(t, dst):
    sb = SB[t & 1]
    ops = [f"v_max3_f32 v{dst}, v{sb}, v{sb+1}, v{sb+2}", f"v_max3_f32 v{dst+1}, v{sb+3}, v{sb+4}, v{sb+5}"]
    rest = list(range(6, 16))
    for i in range(0, 10, 2):
        m = dst + (i // 2) % 2
        ops.append(f"v_max3_f32 v{m}, v{m}, v{sb+rest[i]}, v{sb+rest[i+1]}")
    ops += [f"v_max_f32 v{dst}, v{dst}, v{dst+1}", f"v_mov_b32 v{dst+1}, v{dst}",
            f"v_permlane32_swap_b32 v{dst}, v{dst+1}", f"v_max_f32 v{dst}, v{dst}, v{dst+1}",
            f"v_mul_f32 v{dst}, s44, v{dst}", f"v_ceil_f32 v{dst}, v{dst}"]
    return ops
fill = {k: [] for k in range(NS)}
post = {k: [] for k in range(NS)}
pre = {k: [] for k in range(NS)}
BPOS = 8 - D
q1 = bslots("QK", 1)
mo = max_ops(0, T0) + [f"v_mov_b32 v{M}, v{T0}", ("INITW",)]
assert BPOS >= 3
per = -(-len(mo) // (BPOS - 2)) if BPOS > 2 else len(mo)
for i, k in enumerate(q1[2:BPOS] if BPOS > 2 else [q1[1]]):
    fill[k] += mo[i * per:(i + 1) * per]
pre[q1[min(BPOS + 2, 7)]].append(("INITGET",))
for t in range(8):
    ops = sm_ops(t)
    if t == 0: carriers = q1[min(BPOS + 2, 7):]
    elif t <= 6: carriers = bslots("PV", t - 1)[2:] + bslots("QK", t + 1)
    else: carriers = bslots("PV", 6)[2:]
    total = sum(c for c, _ in ops)
    budget = min(total / len(carriers), 26)
    acc = 0.0; used = 0
    for ci, k in enumerate(carriers):
        acc += budget
        while ops and used + ops[0][0] / 2 <= acc:
            c, o = ops.pop(0); used += c; fill[k].append(o)
    lastk = carriers[-1]
    post[lastk] += [o for _, o in ops]
    post[lastk] += [("A", t)]
state = dict(stat_written=False)
def barrier(cert, nfree):
    lds_wait("Q"); lds_wait("SW")
    if cert:
        assert not any(p[0] + str(p[1]) == cert for p in pending), ("not issued", cert)
        if state.get("helper_busy"): only("loader")
        vm_wait(cert)
        if state.get("helper_busy"): end_only()
    stamp("w" + str(cert))
    if "xnobar" not in flags: a("s_barrier")
    stamp("b" + str(cert))
    freed[0] = max(freed[0], nfree)
    if state["stat_written"]:
        state["stat_written"] = False
        for kk in range(1, KS):
            a(f"ds_read_b64 v[{PS+2*(kk-1)}:{PS+2*(kk-1)+1}], v{RA} offset:{(kk-1)*1024}"); lds_q.append("SR")
def write_stats():
    for kk in range(1, KS):
        a(f"ds_write_b64 v{RA+kk}, v[{M}:{M+1}]"); lds_q.append("SW")
    state["stat_written"] = True
def act(o):
    if isinstance(o, str): a(o); return
    if o[0] == "INITW": write_stats(); return
    if o[0] == "INITGET":
        lds_wait("SR")
        for kk in range(1, KS): a(f"v_max_f32 v{M}, v{M}, v{PS+2*(kk-1)}")
        return
    t = o[1]
    if t == 0: a(f"v_mov_b32 v{LSUM}, v{LT0}"); return
    a(f"v_cmp_lt_f32 vcc, s60, v{LT0}")
    if "xnorare" not in flags: a(f"s_cbranch_vccnz L_rareA{t}")
    a.label(f"L_backA{t}", flush=False)
    a(f"v_add_f32 v{LSUM}, v{LSUM}, v{LT0}")
    if t == 7: write_stats()
adj = {}
def issue_reads(k):
    ty, t, x, y = slots[k]
    f = FR + 4 * (k % NF)
    if ty == "QK":
        cb = chunk_base("K", t)
        if cb < REG: a(f"ds_read_b128 v[{f}:{f+3}], v{O0+8+x} offset:{cb}")
        else: a(f"ds_read_b128 v[{f}:{f+3}], v{KA+x} offset:{cb - REG}")
        lds_q.append(k)
    else:
        cb = chunk_base("V", t)
        ar = VA + y; off = cb
        if cb >= REG:
            if ar not in adj:
                adj[ar] = KA + y
                a(f"v_add_u32 v{adj[ar]}, {REG}, v{ar}")
            ar = adj[ar]; off = cb - REG
        for e in range(2):
            a(f"ds_read_b64_tr_b16 v[{f+2*e}:{f+2*e+1}], v{ar} offset:{off + x*4096 + e*2048}")
            lds_q.append(k)
certified = {0}
nread = [0]
LASTB = len(blocks) - 1
def reads_upto(kt):
    while nread[0] <= min(kt, NS - 1) and blk_of[nread[0]] in certified:
        issue_reads(nread[0]); nread[0] += 1
NOUT = X - 1
def helper_touch():
    state["helper_busy"] = True
    only("helper")
    a(f"global_load_dwordx2 v[{GW}:{GW+1}], v{DBG}, s[12:13] sc1")
    end_only()
NTOUCH = 2 * (X - 1) if "notouch" not in flags else 0
def late_touch():
    a(f"global_load_dwordx2 v[{GW}:{GW+1}], v{DBG}, s[12:13] sc1"); vm_issue("gw")
    for k in range(1, X):
        a(f"s_xor_b32 s55, s62, {k}")
        a(f"s_lshl_b32 s55, s55, 3")
        a(f"s_add_u32 s55, s55, s36")
        a(f"s_lshl_b32 s{87+k}, s55, 12")
        if NTOUCH:
            a(f"buffer_load_dwordx2 v[{JUNK}:{JUNK+1}], v{RW8}, s[32:35], s{87+k} offen offset:3072 sc1{TPOL}"); vm_issue("touch")
            a(f"buffer_load_dwordx4 v[{JUNK}:{JUNK+3}], v{LN16}, s[32:35], s{87+k} offen offset:{(k-1)*1024} sc1{TPOL}"); vm_issue("touch")
def helper_clear():
    only("helper")
    a("s_waitcnt vmcnt(0)")
    a(f"v_readfirstlane_b32 s46, v{GW}")
    def clr(pol):
        for half in range(2):
            a(f"s_add_u32 s63, s80, {half*16384}")
            for j in range(NOUT):
                a(f"buffer_store_dwordx4 v[{ONES}:{ONES+3}], v{LN16}, s[32:35], s63 offen offset:{j*1024}{pol}")
            a(f"buffer_store_dwordx2 v[{ONES}:{ONES+1}], v{RW8}, s[32:35], s63 offen offset:3072{pol}")
    if FAST:
        a("s_cmp_eq_u32 s46, s48")
        a("s_cbranch_scc0 L_clr_slow")
        clr("")
        a("s_branch L_clr_done")
        a.label("L_clr_slow", flush=False)
    clr(" sc1")
    a.label("L_clr_done", flush=False)
    end_only()
for k in range(NS):
    n = blk_of[k]; pos = k % 8
    ty, t, x, y = slots[k]
    is_bar = (pos == BPOS and n + 1 < LASTB) or (pos == 0 and n == LASTB)
    if is_bar:
        nb = n + 1 if n < LASTB else n
        if n == TA_:
            only("helper"); a("s_waitcnt vmcnt(0)"); end_only()
        barrier(chunk_of(blocks[nb]), n - 1); certified.add(nb)
        reads_upto(k + D)
        try_dma(KS * DRATE)
        if n == TB: helper_touch()
        if n == TC: helper_clear()
        if n == TA_:
            only("w0")
            a(f"v_mov_b32 v{JUNK}, 1")
            a("s_mov_b64 exec, 1")
            a(f"global_atomic_add v{DBG}, v{JUNK}, s[12:13] offset:4")
            a("s_mov_b64 exec, -1")
            end_only()
        if n == TT: late_touch()
        if n == LASTB:
            lds_wait("SR")
            if KS == 2:
                a(f"v_cmp_neq_f32 vcc, v{M}, v{PS}")
            else:
                a(f"v_max3_f32 v{T0}, v{PS}, v{PS+2}, v{PS+4}")
                a(f"v_min3_f32 v{T1}, v{PS}, v{PS+2}, v{PS+4}")
                a(f"v_max_f32 v{T0}, v{T0}, v{M}")
                a(f"v_min_f32 v{T1}, v{T1}, v{M}")
                a(f"v_cmp_neq_f32 vcc, v{T0}, v{T1}")
            if "xnorare" not in flags: a(f"s_cbranch_vccnz L_rareB")
            a.label("L_backB", flush=False)
    reads_upto(k + D)
    for o in pre[k]: act(o)
    if k == 0: lds_wait("Q")
    lds_wait(k)
    f = FR + 4 * (k % NF)
    if ty == "QK":
        sb = SB[t & 1]
        cin = "0" if x == 0 else f"v[{sb}:{sb+15}]"
        a(f"v_mfma_f32_32x32x16_bf16 v[{sb}:{sb+15}], v[{f}:{f+3}], v[{QF+4*x}:{QF+4*x+3}], {cin}")
    else:
        ob = O0 + 16 * y; pb = PB[t & 1] + 4 * x
        cin = "0" if (t == 0 and x == 0) else f"v[{ob}:{ob+15}]"
        a(f"v_mfma_f32_32x32x16_bf16 v[{ob}:{ob+15}], v[{f}:{f+3}], v[{pb}:{pb+3}], {cin}")
    for o in fill[k]:
        if "xnovalu" not in flags or not isinstance(o, str): act(o)
    for o in post[k]: act(o)
    if n == LASTB:
        PKD = SB[0]
        if pos == 0:
            for kk in range(1, KS): a(f"v_add_f32 v{LSUM}, v{LSUM}, v{PS+2*(kk-1)+1}")
            a(f"v_mov_b32 v{LT1}, v{LSUM}")
            a(f"v_permlane32_swap_b32 v{LSUM}, v{LT1}")
            a(f"v_add_f32 v{LSUM}, v{LSUM}, v{LT1}")
        if pos == 1:
            a(f"s_mul_i32 s50, s36, {(KS-1)*SLOT}")
            a(f"v_add_u32 v{RA}, s50, v{LN16}")
            for kk in range(1, KS):
                a(f"s_mul_i32 s50, s{84+kk}, {SLOT}")
                a(f"v_add_u32 v{RA+kk}, s50, v{LN16}")
            a(f"v_min_u32 v{M}, -2, v{M}")
            a(f"v_min_u32 v{LSUM}, -2, v{LSUM}")
        if pos >= 3 and pos % 2 == 1:
            yb = 3 - (pos - 3) // 2
            if yb >= NBLK:
                kk = yb // NBLK; i0 = yb % NBLK
                r0 = PKD + (yb - NBLK) * 8
                for i in range(8):
                    a(f"v_cvt_pk_bf16_f32 v{r0+i}, v{O0+16*yb+2*i}, v{O0+16*yb+2*i+1}")
                a(f"ds_write_b128 v{RA+kk}, v[{r0}:{r0+3}] offset:{i0*2048}"); lds_q.append("MW")
                a(f"ds_write_b128 v{RA+kk}, v[{r0+4}:{r0+7}] offset:{i0*2048+1024}"); lds_q.append("MW")
assert not pending, pending
stamp("lend")
a("s_waitcnt lgkmcnt(0)"); lds_q.clear()
a("s_barrier")
stamp()
if "cyc" in flags:
    i = nst[0]; nst[0] += 1
    a("s_memtime s[92:93]"); a("s_waitcnt lgkmcnt(0)")
    a(f"s_sub_u32 s92, s92, s94"); a("s_subb_u32 s93, s93, s95")
    a(f"s_add_u32 s{64+2*i}, s92, s64"); a(f"s_addc_u32 s{65+2*i}, s93, s65")
PKD = SB[0]
order = list(range(1, X)) + [0]
rd = []
for p in order:
    for kk in range(1, KS):
        r = PKD + ((kk - 1) * X + p) * 4
        a(f"ds_read_b128 v[{r}:{r+3}], v{RA} offset:{(kk-1)*SLOT + p*1024}")
        rd.append((p, kk, r))
a(f"""
s_waitcnt vmcnt({NTOUCH})
s_mov_b32 s58, {SPIN}
L_gw:
v_readfirstlane_b32 s46, v{GW}
v_readfirstlane_b32 s47, v{GW+1}
s_cmp_eq_u32 s47, 8
s_cbranch_scc1 L_gw_ok
s_sub_u32 s58, s58, 1
s_cmp_eq_u32 s58, 0
s_cbranch_scc1 L_gw_ok
global_load_dwordx2 v[{GW}:{GW+1}], v{DBG}, s[12:13] sc1
s_waitcnt vmcnt(0)
s_branch L_gw
L_gw_ok:
s_cmp_eq_u32 s46, s48
s_cselect_b32 s57, 1, 0
""")
outst.clear()
PK = QF
def merge_and_publish(pol):
    a(f"buffer_store_dwordx2 v[{M}:{M+1}], v{RW8}, s[32:35], s80 offen offset:3072{pol}")
    cnt = 0
    for p in order:
        for kk in range(1, KS):
            r = PKD + ((kk - 1) * X + p) * 4
            cnt += 1
            a(f"s_waitcnt lgkmcnt({len(rd) - cnt})")
            for i in range(4):
                a(f"v_lshlrev_b32 v{T0}, 16, v{r+i}")
                a(f"v_and_b32 v{T1}, 0xffff0000, v{r+i}")
                a(f"v_add_f32 v{O0+8*p+2*i}, v{O0+8*p+2*i}, v{T0}")
                a(f"v_add_f32 v{O0+8*p+2*i+1}, v{O0+8*p+2*i+1}, v{T1}")
        if p:
            for i in range(4):
                a(f"v_cvt_pk_bf16_f32 v{PK+4*p+i}, v{O0+8*p+2*i}, v{O0+8*p+2*i+1}")
            for i in range(4):
                a(f"v_min_u32 v{PK+4*p+i}, -2, v{PK+4*p+i}")
            a(f"buffer_store_dwordx4 v[{PK+4*p}:{PK+4*p+3}], v{LN16}, s[32:35], s80 offen offset:{(p-1)*1024}{pol}")
if FAST:
    a("s_cbranch_scc0 L_slow")
    merge_and_publish("")
    a("s_branch L_pub_done")
    a("L_slow:")
merge_and_publish(" sc1")
a("L_pub_done:")
stamp()
IN = O0 + 32
ST = FR
a(f"s_mov_b32 s58, {SPIN}")
a("L_poll:")
for k in range(1, X):
    a(f"buffer_load_dwordx2 v[{ST+2*k}:{ST+2*k+1}], v{RW8}, s[32:35], s{87+k} offen offset:3072 sc1")
    a(f"buffer_load_dwordx4 v[{IN+4*(k-1)}:{IN+4*(k-1)+3}], v{LN16}, s[32:35], s{87+k} offen offset:{(k-1)*1024} sc1")
a(f"""
s_sub_u32 s58, s58, 1
s_cmp_eq_u32 s58, 0
s_cbranch_scc1 L_poll_done
s_waitcnt vmcnt(0)
""")
regs = [ST + 2 * k + i for k in range(1, X) for i in range(2)] + [IN + i for i in range(4 * (X - 1))]
a(f"v_max3_u32 v{T0}, v{regs[0]}, v{regs[1]}, v{regs[2]}")
rest = regs[3:]
while rest:
    if len(rest) >= 2: a(f"v_max3_u32 v{T0}, v{T0}, v{rest[0]}, v{rest[1]}"); rest = rest[2:]
    else: a(f"v_max_u32 v{T0}, v{T0}, v{rest[0]}"); rest = []
a(f"""
v_cmp_eq_u32 vcc, -1, v{T0}
s_cbranch_vccnz L_poll
L_poll_done:
s_waitcnt vmcnt(0)
""")
stamp()
a(f"v_max_f32 v{T0}, v{M}, v{ST+2}")
for k in range(2, X): a(f"v_max_f32 v{T0}, v{T0}, v{ST+2*k}")
a(f"v_sub_f32 v{ST}, v{M}, v{T0}")
for k in range(1, X): a(f"v_sub_f32 v{ST+2*k}, v{ST+2*k}, v{T0}")
for k in range(X): a(f"v_exp_f32 v{ST+2*k}, v{ST+2*k}")
a(f"v_mul_f32 v{T1}, v{ST}, v{LSUM}")
for k in range(1, X): a(f"v_fmac_f32 v{T1}, v{ST+2*k}, v{ST+2*k+1}")
a(f"v_rcp_f32 v{T1}, v{T1}")
for i in range(8): a(f"v_mul_f32 v{O0+i}, v{O0+i}, v{ST}")
for k in range(1, X):
    for i in range(4):
        r = IN + 4 * (k - 1) + i
        a(f"v_lshlrev_b32 v{T2}, 16, v{r}")
        a(f"v_and_b32 v{T3}, 0xffff0000, v{r}")
        a(f"v_fmac_f32 v{O0+2*i}, v{T2}, v{ST+2*k}")
        a(f"v_fmac_f32 v{O0+2*i+1}, v{T3}, v{ST+2*k}")
for i in range(8): a(f"v_mul_f32 v{O0+i}, v{O0+i}, v{T1}")
for i in range(4):
    a(f"v_cvt_pk_bf16_f32 v{PK+i}, v{O0+2*i}, v{O0+2*i+1}")
a(f"""
v_and_b32 v{T0}, 31, v1
v_lshrrev_b32 v{T1}, 5, v1
v_lshlrev_b32 v{T0}, 8, v{T0}
v_lshl_add_u32 v{T0}, v{T1}, 3, v{T0}
s_lshl_b32 s50, s40, 13
s_lshl_b32 s51, s41, {8 - lK}
s_add_u32 s50, s50, s51
s_lshl_b32 s51, s38, 5
s_add_u32 s50, s50, s51
buffer_store_dwordx2 v[{PK}:{PK+1}], v{T0}, s[28:31], s50 offen
buffer_store_dwordx2 v[{PK+2}:{PK+3}], v{T0}, s[28:31], s50 offen offset:16
""")
if STAMPS:
    stamp()
    n = min(nst[0], 8)
    a(f"""
s_cmp_lg_u32 s36, {optv("stw", 0)}
s_cbranch_scc1 L_done
s_add_u32 s14, s14, {200<<20}
s_addc_u32 s15, s15, 0
s_lshl_b32 s3, s2, 6
v_mov_b32 v3, s3
""")
    for i in range(16):
        a(f"v_mov_b32 v{4+i}, s{64+min(i, 2*n-2+(i&1))}")
    a("""
s_mov_b64 exec, 1
global_store_dwordx4 v3, v[4:7], s[14:15]
global_store_dwordx4 v3, v[8:11], s[14:15] offset:16
global_store_dwordx4 v3, v[12:15], s[14:15] offset:32
global_store_dwordx4 v3, v[16:19], s[14:15] offset:48
""")
a("L_done:")
a("s_endpgm")
for t in range(1, 8):
    a(f"L_rareA{t}:")
    a("s_nop 15")
    for o in max_ops(t, TMP): a(o)
    a(f"""
v_max_f32 v{TMP}, v{TMP}, v{M}
v_sub_f32 v{TMP+1}, v{M}, v{TMP}
v_exp_f32 v{TMP+1}, v{TMP+1}
v_mov_b32 v{M}, v{TMP}
v_mul_f32 v{LSUM}, v{LSUM}, v{TMP+1}
""")
    for r in range(64): a(f"v_mul_f32 v{O0+r}, v{O0+r}, v{TMP+1}")
    for _, o in sm_ops(t): a(o)
    a.fence()
    a(f"s_branch L_backA{t}")
a("L_rareB:")
a("s_nop 15")
a(f"v_max_f32 v{T0}, v{M}, v{PS}")
for kk in range(2, KS): a(f"v_max_f32 v{T0}, v{T0}, v{PS+2*(kk-1)}")
a(f"v_sub_f32 v{T1}, v{M}, v{T0}")
a(f"v_exp_f32 v{T1}, v{T1}")
for kk in range(1, KS):
    a(f"v_sub_f32 v{TMP+kk}, v{PS+2*(kk-1)}, v{T0}")
    a(f"v_exp_f32 v{TMP+kk}, v{TMP+kk}")
    a(f"v_mul_f32 v{PS+2*(kk-1)+1}, v{PS+2*(kk-1)+1}, v{TMP+kk}")
a(f"v_mov_b32 v{M}, v{T0}")
a(f"v_mul_f32 v{LSUM}, v{LSUM}, v{T1}")
for r in range(64): a(f"v_mul_f32 v{O0+r}, v{O0+r}, v{T1}")
pb = PB[1]
for i in range(8):
    a(f"v_lshlrev_b32 v{TMP+4}, 16, v{pb+i}")
    a(f"v_and_b32 v{TMP+5}, 0xffff0000, v{pb+i}")
    a(f"v_mul_f32 v{TMP+4}, v{TMP+4}, v{T1}")
    a(f"v_mul_f32 v{TMP+5}, v{TMP+5}, v{T1}")
    a(f"v_cvt_pk_bf16_f32 v{pb+i}, v{TMP+4}, v{TMP+5}")
a.fence()
a("s_branch L_backB")
a.raw(f""".section .rodata,"a"
.p2align 6
.amdhsa_kernel {NAME}
  .amdhsa_next_free_vgpr {NV}
  .amdhsa_next_free_sgpr 96
  .amdhsa_accum_offset {(NV + 3) // 4 * 4}
  .amdhsa_group_segment_fixed_size 0
  .amdhsa_kernarg_size 48
  .amdhsa_user_sgpr_count 2
  .amdhsa_user_sgpr_kernarg_segment_ptr 1
  .amdhsa_system_sgpr_workgroup_id_x 1
.end_amdhsa_kernel""")
txt = a.text()
import re
txt = re.sub(r"lds=\d+", f"lds={LDS}", txt, count=1)
print(txt)
print(f"; NV={NV} LDS={LDS} nops inserted: {a.nops}", file=sys.stderr)
```

```python
import sys, math, struct, re
from asmgen import Asm
flags = set(sys.argv[1:])
def optv(name, d):
    for f in flags:
        if f.startswith(name + "="): return f.split("=", 1)[1]
    return d
X = 4
STAMPS = "stamps" in flags
FAST = "nofast" not in flags
KVPOL = "" if "kvplain" in flags else " nt"
QPOL = " nt" if "qnt" in flags else ""
TPOL = " nt" if "tnt" in flags else ""
D = 3; NF = 4
THR = float(optv("thr", 1024.0))
GSLEEP = int(optv("gs", 4)); PSLEEP = int(optv("ps", 1)); LPRIO = int(optv("lprio", 1))
SPIN = 0x40000
NAME = "standalone__gqa_softmax__near_ridge_kernel"
GRP = 1088; TILE = 8 * GRP; CH = 2 * TILE; NB = 4; REG = NB * CH
FLAGB = 2 * REG; STATB = FLAGB + 256; LDS = STATB + 8192
def slot_base(n): return (n & 1) * REG + ((n >> 1) % NB) * CH
def q_base(g): return slot_base(6 + (g >> 1)) + (g & 1) * TILE
WS_PAIR = 1 << 18
C = (128 ** -0.5) * math.log2(math.e)
def f2u(x): return struct.unpack("<I", struct.pack("<f", x))[0]

a = Asm()
a.raw(f"""; GQA attention (B8 Hq32 Hkv4 Sq32 Sk2048 D128): 128 query rows x 512 keys per workgroup; 8 compute waves + 4 loader waves.
; @launch grid=(256,1,1) block=(768,1,1) lds={LDS}
.amdgcn_target "amdgcn-amd-amdhsa--gfx950"
.text
.globl {NAME}
.p2align 8
.type {NAME},@function
{NAME}:""")
lds_q = []
def lds_wait(tag):
    idxs = [i for i, t in enumerate(lds_q) if t == tag]
    if not idxs: return
    idx = max(idxs); n = len(lds_q) - 1 - idx
    a(f"s_waitcnt lgkmcnt({min(n,15)})")
    del lds_q[:idx + 1]
nst = [0]
SEL = optv("st", None); SEL = set(SEL.split(",")) if SEL else None
def stamp(name="d"):
    if not STAMPS: return
    if SEL is None and name != "d": return
    if SEL is not None and name not in SEL: return
    i = nst[0]; nst[0] += 1
    if i >= 8: return
    a(f"s_memrealtime s[{64+2*i}:{65+2*i}]")
    a("s_waitcnt lgkmcnt(0)")

QF = 0; O0 = 32; S0 = 96; XB = 112; PB = 128; FR = 136; TMP = 152; KA = 156; VA = 158
M, LSUM, LT0, LT1, FL, VP = 162, 163, 164, 165, 166, 167
NV = 168
LANE = O0 + 40
t0, t1, t2, t3 = O0 + 41, O0 + 42, O0 + 43, O0 + 44

a(f"""
s_cmp_ge_u32 s2, 256
s_cbranch_scc1 L_done
s_load_dwordx8 s[4:11], s[0:1], 0
s_load_dwordx4 s[12:15], s[0:1], 32
""")
if STAMPS:
    a("s_memrealtime s[64:65]"); nst[0] = 1
a(f"""
v_lshrrev_b32 v{t0}, 6, v0
v_and_b32 v{LANE}, 63, v0
v_readfirstlane_b32 s36, v{t0}
s_and_b32 s37, s2, 7
s_lshr_b32 s62, s2, 3
s_lshl_b32 s37, s37, 2
s_lshr_b32 s39, s62, 3
s_add_u32 s37, s37, s39                  ; pair
s_and_b32 s62, s62, 7                    ; sub
s_lshr_b32 s39, s62, 2                   ; rowset
s_and_b32 s38, s62, 3
s_lshl_b32 s42, s37, 16
s_lshl_b32 s43, s39, 15
s_add_u32 s42, s42, s43
s_getreg_b32 s48, hwreg(HW_REG_XCC_ID, 0, 4)
s_lshl_b32 s48, s48, 2
s_mov_b32 s96, 0x200000
s_cmp_lt_u32 s36, 8
s_cbranch_scc1 L_compute
""")
DK, DV, LFA, LV, LN, LR8, LDBG, LGW, LONE, LPR = 1, 2, 3, 4, 5, 6, 7, 8, 12, 16
CLRT = int(optv("clrt", 3)); TCHT = int(optv("tcht", 5)); RAMPN = int(optv("rampn", 4)); LW2 = int(optv("lw", 8))
a(f"""
s_setprio {LPRIO}
v_lshrrev_b32 v{t0}, 4, v{LANE}
v_and_b32 v{t1}, 15, v{LANE}
v_xor_b32 v{t2}, v{t1}, v{t0}
v_lshlrev_b32 v{t2}, 4, v{t2}
v_lshl_add_u32 v{DK}, v{t0}, 8, v{t2}
s_lshl_b32 s43, s37, 19
s_lshl_b32 s45, s38, 17
s_add_u32 s43, s43, s45
s_and_b32 s40, s36, 3
s_lshl_b32 s41, s40, 12
s_mul_i32 s46, s40, {4*GRP}
s_lshr_b32 s47, s40, 1
s_mul_i32 s47, s47, {TILE}
s_and_b32 s49, s40, 1
s_lshl_b32 s49, s49, 12
s_add_u32 s47, s47, s49
s_mov_b32 s18, 32768
s_mov_b32 s19, 0x20000
s_mov_b32 s22, 131072
s_mov_b32 s23, 0x20000
s_waitcnt lgkmcnt(0)
s_add_u32 s20, s6, s43
s_addc_u32 s21, s7, 0
s_add_u32 s16, s4, s42
s_addc_u32 s17, s5, 0
""")
def kq(srd, sl, lconst, sg, gconst, pol):
    for g in range(4):
        a(f"s_add_u32 m0, {sl}, {lconst + g*GRP}")
        a(f"s_add_u32 s59, {sg}, {gconst + g*1024}")
        a(f"buffer_load_dwordx4 v{DK}, {srd}, s59 offen{pol} lds")
def vq_(sl, sg):
    a(f"s_mov_b32 m0, {sl}")
    for g in range(4):
        a(f"buffer_load_dwordx4 v{DV}, s[24:27], {sg} offen offset:{g*1024}{KVPOL} lds")
vq = []
def lk(t):
    n = 0 if t == 0 else 2 * t - 1
    kq("s[20:23]", "s46", slot_base(n), "s41", t * 16384, KVPOL); vq.extend([f"K{t}"] * 4)
def lv(t):
    n = 2 + 2 * t if t < 7 else 15
    a(f"s_add_u32 s86, s47, {slot_base(n)}")
    a(f"s_add_u32 s87, s41, {t * 16384}")
    vq_("s86", "s87"); vq.extend([f"V{t}"] * 4)
def lwait(*tags):
    idx = max((i for i, t in enumerate(vq) if t in tags), default=None)
    if idx is None: return
    a(f"s_waitcnt vmcnt({len(vq) - 1 - idx})"); del vq[:idx + 1]
lk(0)
kq("s[16:19]", "s46", slot_base(6), "s41", 0, QPOL); vq.extend(["Q"] * 4)
kq("s[16:19]", "s46", slot_base(7), "s41", 16384, QPOL); vq.extend(["Q"] * 4)
lk(1)
a(f"""
v_mov_b32 v{LV}, 1
v_lshlrev_b32 v{t2}, 2, v{t0}
v_xor_b32 v{t2}, v{t1}, v{t2}
v_lshlrev_b32 v{t2}, 4, v{t2}
v_lshl_add_u32 v{DV}, v{t0}, 8, v{t2}
s_mov_b32 s26, 131072
s_mov_b32 s27, 0x20000
s_add_u32 s24, s8, s43
s_addc_u32 s25, s9, 0
s_lshl_b32 s50, s37, 3
v_mov_b32 v{LDBG}, s50
s_lshl_b32 s50, s37, 18
s_add_u32 s32, s14, s50
s_addc_u32 s33, s15, 0
s_mov_b32 s34, {WS_PAIR}
s_mov_b32 s35, 0x20000
v_lshlrev_b32 v{LR8}, 4, v{LANE}
v_mov_b32 v{LONE}, -1
v_mov_b32 v{LONE+1}, -1
v_mov_b32 v{LONE+2}, -1
v_mov_b32 v{LONE+3}, -1
s_lshl_b32 s80, s62, 15
s_lshl_b32 s50, s40, 13
s_add_u32 s80, s80, s50
s_lshl_b32 s51, 1, s48
s_lshl_b32 s48, 8, s48
v_mov_b32 v{LGW}, s51
""")
EARLY = int(optv("early", 1))
if EARLY >= 1: lv(0)
if EARLY >= 2: lk(2)
lwait("Q", "K0"); a("s_barrier")
if EARLY < 1: lv(0)
if EARLY < 2: lk(2)
if EARLY >= 1: lv(1)
lwait("K1"); a("s_barrier")
if EARLY < 1: lv(1)
lk(3)
a("""
s_cmp_lg_u32 s40, 0
s_cbranch_scc1 L_noann
s_mov_b64 exec, 1
""")
a(f"global_atomic_add v{LDBG}, v{LGW}, s[12:13]")
a("s_mov_b64 exec, -1")
a.label("L_noann", flush=False)
lv(2)
lwait("V0"); a("s_barrier")
lk(4)
def clr(pol):
    for w in range(2):
        a(f"s_add_u32 s63, s80, {w*4096}")
        for j in range(3):
            a(f"buffer_store_dwordx4 v[{LONE}:{LONE+3}], v{LR8}, s[32:35], s63 offen offset:{j*1024}{pol}")
        a("s_mov_b64 exec, 0xffff")
        a(f"buffer_store_dwordx4 v[{LONE}:{LONE+3}], v{LR8}, s[32:35], s63 offen offset:3072{pol}")
        a("s_mov_b64 exec, -1")
for t in range(1, 7):
    lwait(f"K{t+1}", f"V{t}")
    if t == CLRT + 1: lwait("clr")
    a("s_barrier")
    if t + 2 <= 6: lv(t + 2)
    if t + 4 <= 7: lk(t + 4)
    if t == 4: lv(7)
    if t == CLRT - 1:
        a(f"global_load_dwordx2 v[{LGW}:{LGW+1}], v{LDBG}, s[12:13] sc1"); vq.append("gw")
    if t == CLRT:
        lwait("gw")
        a(f"v_readfirstlane_b32 s50, v{LGW}")
        if FAST:
            a("s_cmp_eq_u32 s50, s48")
            a("s_cbranch_scc0 L_clr_slow")
            clr("")
            a("s_branch L_clr_done")
            a.label("L_clr_slow", flush=False)
        clr(" sc1")
        a.label("L_clr_done", flush=False)
        vq.extend(["clr"] * 8)
    if t == CLRT + 1:
        a("s_cmp_lg_u32 s40, 0")
        a("s_cbranch_scc1 L_noann2")
        a("s_mov_b64 exec, 1")
        a(f"global_atomic_add v{LDBG}, v{LV}, s[12:13] offset:4")
        a("s_mov_b64 exec, -1")
        a.label("L_noann2", flush=False)
    if t == TCHT and "notouch" not in flags:
        for w in range(2):
            a(f"s_add_u32 s63, s80, {w*4096}")
            for j in range(4):
                if j == 3: a("s_mov_b64 exec, 0xffff")
                a(f"buffer_load_dwordx4 v[{LPR}:{LPR+3}], v{LR8}, s[32:35], s63 offen offset:{j*1024} sc1{TPOL}")
                vq.append("tch")
            a("s_mov_b64 exec, -1")
lwait("V7")
a("""
s_barrier
s_barrier
s_endpgm
""")
a("L_compute:")
a(f"""
s_and_b32 s40, s36, 3
s_lshr_b32 s41, s36, 2
s_lshl_b32 s48, 8, s48
s_mov_b32 s44, {f2u(C):#x}
s_mov_b32 s60, {f2u(THR):#x}
s_mov_b32 s61, 0
v_and_b32 v{t0}, 3, v{LANE}
v_bfe_u32 v{t1}, v{LANE}, 2, 3
v_lshrrev_b32 v{t2}, 5, v{LANE}
v_mul_u32_u24 v{t1}, {GRP}, v{t1}
v_lshl_add_u32 v{t1}, v{t0}, 8, v{t1}
v_xor_b32 v{t3}, v{t2}, v{t0}
v_lshl_add_u32 v{t1}, v{t3}, 4, v{t1}
s_mul_i32 s45, s41, {TILE}
s_add_u32 s46, s45, {REG}
v_add_u32 v{KA}, s46, v{t1}
v_add_u32 v{O0}, s45, v{t1}
s_lshr_b32 s50, s40, 1
s_mul_i32 s49, s50, {slot_base(7) - slot_base(6)}
s_and_b32 s50, s40, 1
s_mul_i32 s50, s50, {TILE}
s_add_u32 s49, s49, s50
s_add_u32 s49, s49, {slot_base(6)}
v_add_u32 v{O0+2}, s49, v{t1}
v_xor_b32 v{KA+1}, 32, v{KA}
v_xor_b32 v{O0+1}, 32, v{O0}
v_xor_b32 v{O0+3}, 32, v{O0+2}
s_lshl_b32 s50, s41, 7
s_lshl_b32 s51, s38, 5
s_or_b32 s50, s50, s51
v_bfe_u32 v{t0}, v{LANE}, 2, 2
v_and_b32 v{t1}, 3, v{LANE}
v_bfe_u32 v{t3}, v{LANE}, 4, 1
v_lshl_add_u32 v{M}, v{t2}, 2, v{t0}
v_lshlrev_b32 v{M}, 8, v{M}
v_lshl_add_u32 v{M}, v{t0}, 6, v{M}
v_lshl_add_u32 v{M}, v{t3}, 5, v{M}
v_lshl_add_u32 v{M}, v{t1}, 3, v{M}
v_xor_b32 v{M}, s50, v{M}
s_add_u32 s47, s45, {CH}
v_add_u32 v{VA}, s47, v{M}
v_xor_b32 v{VA+1}, 64, v{VA}
v_xor_b32 v{VA+2}, 0x80, v{VA}
v_xor_b32 v{VA+3}, 0xc0, v{VA}
s_lshl_b32 s80, s62, 3
s_add_u32 s80, s80, s36
s_lshl_b32 s80, s80, 12
s_xor_b32 s85, s36, 4
s_waitcnt lgkmcnt(0)
s_add_u32 s28, s10, s42
s_addc_u32 s29, s11, 0
s_mov_b32 s30, 32768
s_mov_b32 s31, 0x20000
s_lshl_b32 s50, s37, 18
s_add_u32 s32, s14, s50
s_addc_u32 s33, s15, 0
s_mov_b32 s34, {WS_PAIR}
s_mov_b32 s35, 0x20000
""")
for r in range(4, 64): a(f"v_mov_b32 v{O0+r}, 0")
assert TILE % 256 == 0 and CH % 256 == 0 and GRP % 64 == 0
plab = [0]
def flag_prefetch(): pass
def need_chunks(cnt, prefetched=True):
    if cnt is None: return
    lds_wait("Q")
    a("s_barrier")
polls = []
def post_progress(code): pass
def lane16(dst):
    a(f"v_mbcnt_lo_u32_b32 v{dst}, -1, 0")
    a(f"v_mbcnt_hi_u32_b32 v{dst}, -1, v{dst}")
    a(f"v_lshlrev_b32 v{dst}, 4, v{dst}")
def T(j): return TMP + (j % 2) * 2
def e_ops(j): return [(8, f"v_exp_f32 v{T(j)}, v{XB+2*j}"), (8, f"v_exp_f32 v{T(j)+1}, v{XB+2*j+1}")]
def ac_ops(q):
    if q % 4 == 0: ops = [(4, f"v_add_f32 v{LT0}, v{T(q)}, v{T(q)+1}")]
    else: ops = [(4, f"v_add_f32 v{LT0}, v{LT0}, v{T(q)}"), (4, f"v_add_f32 v{LT0}, v{LT0}, v{T(q)+1}")]
    return ops + [(4, f"v_cvt_pk_bf16_f32 v{PB+q}, v{T(q)}, v{T(q)+1}")]
def f_op(i, src): return (4, f"v_fma_f32 v{XB+i}, v{src+i}, s44, -v{M}")
def sm_list(src):
    ops = []
    ops += [f_op(i, src) for i in range(0, 4)] + e_ops(0)
    ops += [f_op(i, src) for i in range(4, 8)] + e_ops(1)
    ops += [f_op(i, src) for i in range(8, 12)] + ac_ops(0)
    ops += [f_op(i, src) for i in range(12, 16)]
    for j in range(2, 8):
        ops += e_ops(j) + ac_ops(j - 1)
        if j - 1 == 3: ops.append((10, ("C1",)))
    ops += ac_ops(7) + [(10, ("C2",))]
    return ops
def spread(ops, nslots, extra=None):
    extra = extra or [0] * nslots
    total = sum(c for c, _ in ops) + sum(extra)
    out = [[] for _ in range(nslots)]
    acc = used = 0.0
    ops = list(ops)
    for i in range(nslots):
        acc += total / nslots; used += extra[i]
        while ops and used + ops[0][0] / 2 <= acc:
            c, o = ops.pop(0); used += c; out[i].append(o)
    out[-1] += [o for _, o in ops]
    return out
extra = [0] * 16
extra[3] += 8; extra[4] += 8
extra[11] += 8
STEADY = spread(sm_list(S0), 16, extra)
for i, sl in enumerate(STEADY):
    for o in sl:
        if isinstance(o, str):
            m_ = re.match(r"v_cvt_pk_bf16_f32 v(\d+)", o)
            if m_:
                q = int(m_.group(1)) - PB
                assert (1 <= i <= 13) if q < 4 else (5 <= i), (q, i)
            if o.startswith("v_fma"): assert i <= 5, i
rare = []
def act(o, ctx):
    if isinstance(o, str): a(o); return
    name = f"{o[0]}{ctx}"
    if ctx == "p":
        if o[0] == "C1": a(f"v_mov_b32 v{LSUM}, v{LT0}")
        else: a(f"v_add_f32 v{LSUM}, v{LSUM}, v{LT0}")
        return
    a(f"v_cmp_lt_f32 vcc, s60, v{LT0}")
    if "xnorare" not in flags: a(f"s_cbranch_vccnz L_rare{name}")
    a.label(f"L_back{name}", flush=False)
    a(f"v_add_f32 v{LSUM}, v{LSUM}, v{LT0}")
    rare.append((o[0], ctx))
fidx = [0]
def kread(x, areg, off):
    f = FR + 4 * (fidx[0] % NF); tag = ("f", fidx[0] % NF); fidx[0] += 1
    a(f"ds_read_b128 v[{f}:{f+3}], v{areg+(x&1)} offset:{off + (x>>1)*64}"); lds_q.append(tag)
def vread(mh, y):
    f = FR + 4 * (fidx[0] % NF); tag = ("f", fidx[0] % NF); fidx[0] += 1
    for e in range(2):
        a(f"ds_read_b64_tr_b16 v[{f+2*e}:{f+2*e+1}], v{VA+y} offset:{mh*4096 + e*2048}"); lds_q.append(tag)
midx = [0]
def mfma(dst, b, first):
    f = FR + 4 * (midx[0] % NF); lds_wait(("f", midx[0] % NF)); midx[0] += 1
    cin = "0" if first else f"v[{dst}:{dst+15}]"
    a(f"v_mfma_f32_32x32x16_bf16 v[{dst}:{dst+15}], v[{f}:{f+3}], v[{b}:{b+3}], {cin}")
PVORD = [(mh, blk) for mh in range(2) for blk in range(4)]
PV7ORD = [(mh, blk) for blk in (3, 2, 1, 0) for mh in range(2)]

need_chunks(1, prefetched=False)
stamp("k0b")
if "cyc" in flags: a("s_memtime s[94:95]"); a("s_waitcnt lgkmcnt(0)")
for s in range(8):
    a(f"ds_read_b128 v[{QF+4*s}:{QF+4*s+3}], v{O0+2+(s&1)} offset:{(s>>1)*64}"); lds_q.append("Q")
for x in range(3): kread(x, O0, 0)
lds_wait("Q"); post_progress(1)
for x in range(8):
    if x == 3: flag_prefetch()
    if x == 5: need_chunks(2)
    if x + 3 < 8: kread(x + 3, O0, 0)
    else: kread(x + 3 - 8, KA, 0)
    mfma(XB, QF + 4 * x, x == 0)
post_progress(2)
def max_ops(src, dst):
    ops = [f"v_max3_f32 v{dst}, v{src}, v{src+1}, v{src+2}", f"v_max3_f32 v{dst+1}, v{src+3}, v{src+4}, v{src+5}"]
    rest = list(range(6, 16))
    for i in range(0, 10, 2):
        m = dst + (i // 2) % 2
        ops.append(f"v_max3_f32 v{m}, v{m}, v{src+rest[i]}, v{src+rest[i+1]}")
    ops += [f"v_max_f32 v{dst}, v{dst}, v{dst+1}", f"v_mov_b32 v{dst+1}, v{dst}",
            f"v_permlane32_swap_b32 v{dst}, v{dst+1}", f"v_max_f32 v{dst}, v{dst}, v{dst+1}"]
    return ops
ntail = len(STEADY[14]) + len(STEADY[15])
full0 = sm_list(XB)
pro_ops = [(4, o) for o in max_ops(XB, TMP)] + [(4, f"v_mul_f32 v{M}, s44, v{TMP}")] + full0[:len(full0) - ntail]
for x in range(8):
    if x == 3: flag_prefetch()
    if x == 5:
        need_chunks(3)
        a(f"v_add_u32 v{KA}, {CH}, v{KA}"); a(f"v_add_u32 v{KA+1}, {CH}, v{KA+1}")
    if x + 3 < 8: kread(x + 3, KA, 0)
    else: vread(*PVORD[x + 3 - 8])
    mfma(S0, QF + 4 * x, x == 0)
    if x >= 2:
        used = 0
        while pro_ops and used + pro_ops[0][0] <= 26:
            c, o = pro_ops.pop(0); used += c; act(o, "p")
post_progress(3)
for c, o in pro_ops: act(o, "p")
for r in range(4): a(f"v_mov_b32 v{O0+r}, 0")
a("s_mov_b32 s81, 1")
a("s_mov_b32 s82, 4")
a(f"s_mov_b32 s84, {(-3*CH) & 0xffffffff}")
loop_q = list(lds_q)
def stage(ctx, last):
    for p, (mh, blk) in enumerate(PVORD):
        if p == 3 and not last: flag_prefetch()
        if p == 5:
            if not last: need_chunks("s82")
            else: lds_wait("FL")
        if p + 3 < 8: vread(*PVORD[p + 3])
        elif not last: kread(p + 3 - 8, KA, 0)
        mfma(O0 + 16 * blk, PB + 4 * mh, False)
        if p == 4:
            a("s_and_b32 s50, s81, 3")
            a("s_cmp_eq_u32 s50, 3")
            a(f"s_cselect_b32 s86, s84, {CH}")
            if last: a(f"s_mov_b32 s86, {REG}")
        if p == 5: a(f"v_add_u32 v{VA}, s86, v{VA}"); a(f"v_add_u32 v{VA+1}, s86, v{VA+1}")
        if p == 6: a(f"v_add_u32 v{VA+2}, s86, v{VA+2}"); a(f"v_add_u32 v{VA+3}, s86, v{VA+3}")
        if p == 7 and not last: post_progress("s82")
        for o in (STEADY[14 + p] if p < 2 else STEADY[p - 2]): act(o, ctx)
    if last: return
    for x in range(8):
        if x == 3: flag_prefetch()
        if x == 5:
            need_chunks(None)
            a(f"v_add_u32 v{KA}, s86, v{KA}"); a(f"v_add_u32 v{KA+1}, s86, v{KA+1}")
        if x + 3 < 8: kread(x + 3, KA, 0)
        else: vread(*PVORD[x + 3 - 8])
        mfma(S0, QF + 4 * x, x == 0)
        if x == 7: post_progress("s82")
        for o in STEADY[6 + x]: act(o, ctx)
a.fence()
a.raw(".p2align 6")
a.label("L_loop", flush=False)
if "itst" in flags:
    for i in range(6): a(f"s_mov_b64 s[{66+2*i}:{67+2*i}], s[{68+2*i}:{69+2*i}]")
    a("s_memrealtime s[78:79]"); a("s_waitcnt lgkmcnt(0)")
    nst[0] = 8
stage("l", False)
assert [t for t in lds_q] == loop_q, (lds_q, loop_q)
a("""
s_add_u32 s81, s81, 1
s_cmp_lt_u32 s81, 7
""")
a.fence()
a("s_cbranch_scc1 L_loop")
if "itst" in flags:
    for i in range(6): a(f"s_mov_b64 s[{66+2*i}:{67+2*i}], s[{68+2*i}:{69+2*i}]")
    a("s_memrealtime s[78:79]"); a("s_waitcnt lgkmcnt(0)")
if "npoll" in flags:
    i = nst[0]; nst[0] += 1
    a("s_sub_u32 s92, 0x200000, s96"); a("s_mul_i32 s92, s92, 100")
    a(f"s_add_u32 s{64+2*i}, s92, s64"); a(f"s_addc_u32 s{65+2*i}, 0, s65")
stage("e", True)
for i in range(6, 16):
    for o in STEADY[i]: act(o, "f")
lane16(TMP + 2)
a(f"s_lshl_b32 s50, s85, 10")
a(f"s_add_u32 s50, s50, {STATB}")
a(f"v_add_u32 v{TMP+3}, s50, v{TMP+2}")
a(f"ds_write_b64 v{TMP+3}, v[{M}:{M+1}]"); lds_q.append("SW")
lds_wait("SW")
a("s_barrier")
a(f"s_lshl_b32 s50, s36, 10")
a(f"s_add_u32 s50, s50, {STATB}")
a(f"v_add_u32 v{TMP+3}, s50, v{TMP+2}")
a(f"ds_read_b64 v[{LT0}:{LT1}], v{TMP+3}"); lds_q.append("SR")
for p in range(3): vread(*PV7ORD[p])
LN16, RW8, RA0, RA1, GW, DBG, AL = QF, QF + 1, QF + 2, QF + 3, QF + 4, QF + 6, QF + 7
PKD = S0
T0, T1, T2, T3 = TMP, TMP + 1, TMP + 2, TMP + 3
for p, (mh, blk) in enumerate(PV7ORD):
    if p + 3 < 8: vread(*PV7ORD[p + 3])
    mfma(O0 + 16 * blk, PB + 4 * mh, False)
    if p == 0:
        lds_wait("SR")
        a(f"""
v_mov_b32 v{LN16}, v{TMP+2}
v_max_f32 v{T0}, v{M}, v{LT0}
v_sub_f32 v{AL}, v{M}, v{T0}
v_sub_f32 v{LT0}, v{LT0}, v{T0}
v_exp_f32 v{AL}, v{AL}
v_exp_f32 v{LT0}, v{LT0}
v_mov_b32 v{M}, v{T0}
s_lshl_b32 s50, s37, 3
v_mov_b32 v{DBG}, s50
global_load_dwordx2 v[{GW}:{GW+1}], v{DBG}, s[12:13] sc1
""")
    if p == 1:
        a(f"""
v_mul_f32 v{LSUM}, v{LSUM}, v{AL}
v_fmac_f32 v{LSUM}, v{LT0}, v{LT1}
v_mov_b32 v{LT1}, v{LSUM}
s_lshl_b32 s50, s36, 12
v_add_u32 v{RA0}, s50, v{LN16}
v_permlane32_swap_b32 v{LSUM}, v{LT1}
v_add_f32 v{LSUM}, v{LSUM}, v{LT1}
s_lshl_b32 s50, s85, 12
v_add_u32 v{RA1}, s50, v{LN16}
""")
    if p == 2:
        a(f"v_min_u32 v{M}, -2, v{M}")
        a(f"v_min_u32 v{LSUM}, -2, v{LSUM}")
        a(f"v_lshrrev_b32 v{RW8}, 1, v{LN16}")
        a(f"v_and_b32 v{RW8}, 0xf8, v{RW8}")
        for kx in range(1, X):
            a(f"s_xor_b32 s55, s62, {kx}")
            a(f"s_lshl_b32 s55, s55, 3")
            a(f"s_add_u32 s55, s55, s36")
            a(f"s_lshl_b32 s{87+kx}, s55, 12")
    if p in (3, 5):
        yb = 3 - (p - 3) // 2
        i0 = yb - 2; r0 = PKD + i0 * 8
        for i in range(16): a(f"v_mul_f32 v{O0+16*yb+i}, v{O0+16*yb+i}, v{AL}")
        for i in range(8):
            a(f"v_cvt_pk_bf16_f32 v{r0+i}, v{O0+16*yb+2*i}, v{O0+16*yb+2*i+1}")
        a(f"ds_write_b128 v{RA1}, v[{r0}:{r0+3}] offset:{i0*2048}"); lds_q.append("MW")
        a(f"ds_write_b128 v{RA1}, v[{r0+4}:{r0+7}] offset:{i0*2048+1024}"); lds_q.append("MW")
stamp("lend")
a("s_waitcnt lgkmcnt(0)"); lds_q.clear()
a("s_barrier")
stamp()
if "cyc" in flags:
    i = nst[0]; nst[0] += 1
    a("s_memtime s[92:93]"); a("s_waitcnt lgkmcnt(0)")
    a(f"s_sub_u32 s92, s92, s94"); a("s_subb_u32 s93, s93, s95")
    a(f"s_add_u32 s{64+2*i}, s92, s64"); a(f"s_addc_u32 s{65+2*i}, s93, s65")
order = [1, 2, 3, 0]
for p in order:
    r = PKD + p * 4
    a(f"ds_read_b128 v[{r}:{r+3}], v{RA0} offset:{p*1024}")
a(f"""
s_waitcnt vmcnt(0)
s_mov_b32 s58, {SPIN}
v_readfirstlane_b32 s46, v{GW}
v_readfirstlane_b32 s47, v{GW+1}
s_cmp_lg_u32 s47, 8
s_cbranch_scc1 L_gw
L_gw_ok:
s_cmp_eq_u32 s46, s48
""")
PK = QF + 8
def merge_and_publish(pol):
    a(f"buffer_store_dwordx2 v[{M}:{M+1}], v{RW8}, s[32:35], s80 offen offset:3072{pol}")
    for cnt, p in enumerate(order):
        r = PKD + p * 4
        a(f"s_waitcnt lgkmcnt({3 - cnt})")
        for i in range(4):
            a(f"v_lshlrev_b32 v{T0}, 16, v{r+i}")
            a(f"v_and_b32 v{T1}, 0xffff0000, v{r+i}")
            a(f"v_fma_f32 v{O0+8*p+2*i}, v{O0+8*p+2*i}, v{AL}, v{T0}")
            a(f"v_fma_f32 v{O0+8*p+2*i+1}, v{O0+8*p+2*i+1}, v{AL}, v{T1}")
        if p:
            for i in range(4):
                a(f"v_cvt_pk_bf16_f32 v{PK+4*p+i}, v{O0+8*p+2*i}, v{O0+8*p+2*i+1}")
            for i in range(4):
                a(f"v_min_u32 v{PK+4*p+i}, -2, v{PK+4*p+i}")
            a(f"buffer_store_dwordx4 v[{PK+4*p}:{PK+4*p+3}], v{LN16}, s[32:35], s80 offen offset:{(p-1)*1024}{pol}")
if FAST:
    a("s_cbranch_scc0 L_slow")
    merge_and_publish("")
else:
    merge_and_publish(" sc1")
a("L_pub_done:")
stamp()
IN = O0 + 32; ST = FR
a(f"s_mov_b32 s58, {SPIN}")
a("L_poll:")
for k in range(1, X):
    a(f"buffer_load_dwordx2 v[{ST+2*k}:{ST+2*k+1}], v{RW8}, s[32:35], s{87+k} offen offset:3072 sc1")
    a(f"buffer_load_dwordx4 v[{IN+4*(k-1)}:{IN+4*(k-1)+3}], v{LN16}, s[32:35], s{87+k} offen offset:{(k-1)*1024} sc1")
a(f"""
s_sub_u32 s58, s58, 1
s_cmp_eq_u32 s58, 0
s_cbranch_scc1 L_poll_done
s_waitcnt vmcnt(0)
""")
regs = [ST + 2 * k + i for k in range(1, X) for i in range(2)] + [IN + i for i in range(4 * (X - 1))]
a(f"v_max3_u32 v{T0}, v{regs[0]}, v{regs[1]}, v{regs[2]}")
rest = regs[3:]
while rest:
    if len(rest) >= 2: a(f"v_max3_u32 v{T0}, v{T0}, v{rest[0]}, v{rest[1]}"); rest = rest[2:]
    else: a(f"v_max_u32 v{T0}, v{T0}, v{rest[0]}"); rest = []
a(f"""
v_cmp_eq_u32 vcc, -1, v{T0}
s_cbranch_vccnz L_poll
L_poll_done:
s_waitcnt vmcnt(0)
""")
stamp()
a(f"v_max3_f32 v{T0}, v{M}, v{ST+2}, v{ST+4}")
a(f"v_max_f32 v{T0}, v{T0}, v{ST+6}")
a(f"v_sub_f32 v{ST}, v{M}, v{T0}")
for k in range(1, X): a(f"v_sub_f32 v{ST+2*k}, v{ST+2*k}, v{T0}")
for k in range(X): a(f"v_exp_f32 v{ST+2*k}, v{ST+2*k}")
a(f"v_mul_f32 v{T1}, v{ST}, v{LSUM}")
for k in range(1, X): a(f"v_fmac_f32 v{T1}, v{ST+2*k}, v{ST+2*k+1}")
a(f"v_rcp_f32 v{T1}, v{T1}")
for i in range(8): a(f"v_mul_f32 v{O0+i}, v{O0+i}, v{ST}")
for k in range(1, X):
    for i in range(4):
        r = IN + 4 * (k - 1) + i
        a(f"v_lshlrev_b32 v{T2}, 16, v{r}")
        a(f"v_and_b32 v{T3}, 0xffff0000, v{r}")
        a(f"v_fmac_f32 v{O0+2*i}, v{T2}, v{ST+2*k}")
        a(f"v_fmac_f32 v{O0+2*i+1}, v{T3}, v{ST+2*k}")
for i in range(8): a(f"v_mul_f32 v{O0+i}, v{O0+i}, v{T1}")
for i in range(4):
    a(f"v_cvt_pk_bf16_f32 v{PK+i}, v{O0+2*i}, v{O0+2*i+1}")
a(f"""
v_lshlrev_b32 v{T0}, 5, v{RW8}
v_lshrrev_b32 v{T1}, 9, v{LN16}
v_lshl_add_u32 v{T0}, v{T1}, 3, v{T0}
s_lshl_b32 s50, s40, 13
s_lshl_b32 s51, s41, 7
s_add_u32 s50, s50, s51
s_lshl_b32 s51, s38, 5
s_add_u32 s50, s50, s51
buffer_store_dwordx2 v[{PK}:{PK+1}], v{T0}, s[28:31], s50 offen
buffer_store_dwordx2 v[{PK+2}:{PK+3}], v{T0}, s[28:31], s50 offen offset:16
""")
if STAMPS:
    stamp()
    n = min(nst[0], 8)
    a(f"""
s_cmp_lg_u32 s36, {optv("stw", 0)}
s_cbranch_scc1 L_done
s_add_u32 s14, s14, {200<<20}
s_addc_u32 s15, s15, 0
s_lshl_b32 s3, s2, 6
v_mov_b32 v3, s3
""")
    for i in range(16):
        a(f"v_mov_b32 v{4+i}, s{64+min(i, 2*n-2+(i&1))}")
    a("""
s_mov_b64 exec, 1
global_store_dwordx4 v3, v[4:7], s[14:15]
global_store_dwordx4 v3, v[8:11], s[14:15] offset:16
global_store_dwordx4 v3, v[12:15], s[14:15] offset:32
global_store_dwordx4 v3, v[16:19], s[14:15] offset:48
""")
a("L_done:")
a("s_endpgm")
for L, cnt in polls:
    a(f"L_pl{L}:")
    a(f"ds_read_b32 v{FL}, v{LT1}")
    a("s_waitcnt lgkmcnt(0)")
    a(f"v_readfirstlane_b32 s61, v{FL}")
    a(f"s_sub_u32 s96, s96, 1")
    a(f"s_cbranch_scc1 L_ok{L}")
    a(f"s_cmp_ge_u32 s61, {cnt}")
    a(f"s_cbranch_scc1 L_ok{L}")
    if PSLEEP: a(f"s_sleep {PSLEEP}")
    a(f"s_branch L_pl{L}")
a(f"""
L_gw:
s_sub_u32 s58, s58, 1
s_cmp_eq_u32 s58, 0
s_cbranch_scc1 L_gw_ok
s_sleep 8
global_load_dwordx2 v[{GW}:{GW+1}], v{DBG}, s[12:13] sc1
s_waitcnt vmcnt(0)
v_readfirstlane_b32 s46, v{GW}
v_readfirstlane_b32 s47, v{GW+1}
s_cmp_lg_u32 s47, 8
s_cbranch_scc1 L_gw
s_branch L_gw_ok
""")
if FAST:
    a("L_slow:")
    merge_and_publish(" sc1")
    a("s_branch L_pub_done")
for kind, ctx in rare:
    a(f"L_rare{kind}{ctx}:")
    a("s_nop 15")
    for o in max_ops(XB, TMP): a(o)
    a(f"""
v_max_f32 v{TMP}, 0, v{TMP}
v_sub_f32 v{TMP+1}, 0, v{TMP}
v_exp_f32 v{TMP+1}, v{TMP+1}
v_add_f32 v{M}, v{M}, v{TMP}
v_mul_f32 v{LSUM}, v{LSUM}, v{TMP+1}
""")
    for r in range(64): a(f"v_mul_f32 v{O0+r}, v{O0+r}, v{TMP+1}")
    for i in range(16): a(f"v_sub_f32 v{XB+i}, v{XB+i}, v{TMP}")
    nq = 4 if kind == "C1" else 8
    for q in range(nq):
        for _, o in e_ops(q) + ac_ops(q): a(o)
    if kind == "C1":
        for _, o in e_ops(4): a(o)
    a.fence()
    a(f"s_branch L_back{kind}{ctx}")
a.raw(f""".section .rodata,"a"
.p2align 6
.amdhsa_kernel {NAME}
  .amdhsa_next_free_vgpr {NV}
  .amdhsa_next_free_sgpr 98
  .amdhsa_accum_offset {NV}
  .amdhsa_group_segment_fixed_size 0
  .amdhsa_kernarg_size 48
  .amdhsa_user_sgpr_count 2
  .amdhsa_user_sgpr_kernarg_segment_ptr 1
  .amdhsa_system_sgpr_workgroup_id_x 1
.end_amdhsa_kernel""")
print(a.text())
print(f"; NV={NV} LDS={LDS} nops inserted: {a.nops}; steady={[len(s) for s in STEADY]}", file=sys.stderr)
```

```python
import sys, math, struct, re
from asmgen import Asm
flags = set(sys.argv[1:])
def optv(name, d):
    for f in flags:
        if f.startswith(name + "="): return f.split("=", 1)[1]
    return d
X = 4
STAMPS = "stamps" in flags
FAST = "nofast" not in flags
KVPOL = "" if "kvplain" in flags else " nt"
QPOL = " nt" if "qnt" in flags else ""
OPOL = optv("opol", "").replace("+", " ")
TPOL = " nt" if "tnt" in flags else ""
D = 3; NF = 4
THR = float(optv("thr", 1024.0))
GSLEEP = int(optv("gs", 4)); PSLEEP = int(optv("ps", 1)); LPRIO = int(optv("lprio", 1))
SPIN = 0x40000
LF = "lfirst" in flags
LSEL = "s_cmp_ge_u32 s36, 4\ns_cbranch_scc1 L_compute" if LF else "s_cmp_lt_u32 s36, 8\ns_cbranch_scc1 L_compute"
F32M = "f32m" in flags
MSH = 13 if F32M else 12
NAME = "standalone__gqa_softmax__near_ridge_kernel"
GRP = 1088; TILE = 8 * GRP; CH = 2 * TILE; NB = 4; REG = NB * CH
FLAGB = 2 * REG; STATB = FLAGB + 256; LDS = STATB + 8192
def slot_base(n): return (n & 1) * REG + ((n >> 1) % NB) * CH
def q_base(g): return slot_base(6 + (g >> 1)) + (g & 1) * TILE
WS_PAIR = 1 << 18
C = (128 ** -0.5) * math.log2(math.e)
def f2u(x): return struct.unpack("<I", struct.pack("<f", x))[0]

a = Asm()
a.raw(f"""; GQA attention (B8 Hq32 Hkv4 Sq32 Sk2048 D128): 128 query rows x 512 keys per workgroup; 8 compute waves + 4 loader waves.
; @launch grid=(256,1,1) block=(768,1,1) lds={LDS}
.amdgcn_target "amdgcn-amd-amdhsa--gfx950"
.text
.globl {NAME}
.p2align 8
.type {NAME},@function
{NAME}:""")
lds_q = []
def lds_wait(tag):
    idxs = [i for i, t in enumerate(lds_q) if t == tag]
    if not idxs: return
    idx = max(idxs); n = len(lds_q) - 1 - idx
    a(f"s_waitcnt lgkmcnt({min(n,15)})")
    del lds_q[:idx + 1]
nst = [0]
SEL = optv("st", None); SEL = set(SEL.split(",")) if SEL else None
def stamp(name="d"):
    if not STAMPS: return
    if SEL is None and name != "d": return
    if SEL is not None and name not in SEL: return
    i = nst[0]; nst[0] += 1
    if i >= 8: return
    a(f"s_memrealtime s[{64+2*i}:{65+2*i}]")
    a("s_waitcnt lgkmcnt(0)")

QF = 0; O0 = 32; S0 = 96; XB = 112; PB = 128; FR = 136; TMP = 152; KA = 156; VA = 158
M, LSUM, LT0, LT1, FL, VP = 162, 163, 164, 165, 166, 167
NV = 168
LANE = O0 + 40
t0, t1, t2, t3 = O0 + 41, O0 + 42, O0 + 43, O0 + 44

a(f"""
s_cmp_ge_u32 s2, 256
s_cbranch_scc1 L_done
s_load_dwordx8 s[4:11], s[0:1], 0
s_load_dwordx4 s[12:15], s[0:1], 32
""")
if STAMPS:
    a("s_memrealtime s[64:65]"); nst[0] = 1
a(f"""
v_lshrrev_b32 v{t0}, 6, v0
v_and_b32 v{LANE}, 63, v0
v_readfirstlane_b32 s36, v{t0}
s_and_b32 s37, s2, 7
s_lshr_b32 s62, s2, 3
s_lshl_b32 s37, s37, 2
s_lshr_b32 s39, s62, 3
s_add_u32 s37, s37, s39                  ; pair
s_and_b32 s62, s62, 7                    ; sub
s_lshr_b32 s39, s62, 2                   ; rowset
s_and_b32 s38, s62, 3
s_lshl_b32 s42, s37, 16
s_lshl_b32 s43, s39, 15
s_add_u32 s42, s42, s43
s_getreg_b32 s48, hwreg(HW_REG_XCC_ID, 0, 4)
s_lshl_b32 s48, s48, 2
s_mov_b32 s96, 0x200000
{LSEL}
""")
DK, DV, LFA, LV, LN, LR8, LDBG, LGW, LONE, LPR = 1, 2, 3, 4, 5, 6, 7, 8, 12, 16
CLRT = int(optv("clrt", 3)); ACKD = int(optv("ackd", 2)); TCHT = int(optv("tcht", 5)); RAMPN = int(optv("rampn", 4)); LW2 = int(optv("lw", 8))
a(f"""
s_setprio {LPRIO}
v_lshrrev_b32 v{t0}, 4, v{LANE}
v_and_b32 v{t1}, 15, v{LANE}
v_xor_b32 v{t2}, v{t1}, v{t0}
v_lshlrev_b32 v{t2}, 4, v{t2}
v_lshl_add_u32 v{DK}, v{t0}, 8, v{t2}
s_lshl_b32 s43, s37, 19
s_lshl_b32 s45, s38, 17
s_add_u32 s43, s43, s45
s_and_b32 s40, s36, 3
s_lshl_b32 s41, s40, 12
s_mul_i32 s46, s40, {4*GRP}
s_lshr_b32 s47, s40, 1
s_mul_i32 s47, s47, {TILE}
s_and_b32 s49, s40, 1
s_lshl_b32 s49, s49, 12
s_add_u32 s47, s47, s49
s_mov_b32 s18, 32768
s_mov_b32 s19, 0x20000
s_mov_b32 s22, 131072
s_mov_b32 s23, 0x20000
s_waitcnt lgkmcnt(0)
s_add_u32 s20, s6, s43
s_addc_u32 s21, s7, 0
s_add_u32 s16, s4, s42
s_addc_u32 s17, s5, 0
""")
def kq(srd, sl, lconst, sg, gconst, pol):
    for g in range(4):
        a(f"s_add_u32 m0, {sl}, {lconst + g*GRP}")
        a(f"s_add_u32 s59, {sg}, {gconst + g*1024}")
        a(f"buffer_load_dwordx4 v{DK}, {srd}, s59 offen{pol} lds")
def vq_(sl, sg):
    a(f"s_mov_b32 m0, {sl}")
    for g in range(4):
        a(f"buffer_load_dwordx4 v{DV}, s[24:27], {sg} offen offset:{g*1024}{KVPOL} lds")
vq = []
def lk(t):
    n = 0 if t == 0 else 2 * t - 1
    kq("s[20:23]", "s46", slot_base(n), "s41", t * 16384, KVPOL); vq.extend([f"K{t}"] * 4)
def lv(t):
    n = 2 + 2 * t if t < 7 else 15
    a(f"s_add_u32 s86, s47, {slot_base(n)}")
    a(f"s_add_u32 s87, s41, {t * 16384}")
    vq_("s86", "s87"); vq.extend([f"V{t}"] * 4)
def lwait(*tags):
    idx = max((i for i, t in enumerate(vq) if t in tags), default=None)
    if idx is None: return
    a(f"s_waitcnt vmcnt({len(vq) - 1 - idx})"); del vq[:idx + 1]
lk(0)
kq("s[16:19]", "s46", slot_base(6), "s41", 0, QPOL); vq.extend(["Q"] * 4)
kq("s[16:19]", "s46", slot_base(7), "s41", 16384, QPOL); vq.extend(["Q"] * 4)
lk(1)
a(f"""
v_mov_b32 v{LV}, 1
v_lshlrev_b32 v{t2}, 2, v{t0}
v_xor_b32 v{t2}, v{t1}, v{t2}
v_lshlrev_b32 v{t2}, 4, v{t2}
v_lshl_add_u32 v{DV}, v{t0}, 8, v{t2}
s_mov_b32 s26, 131072
s_mov_b32 s27, 0x20000
s_add_u32 s24, s8, s43
s_addc_u32 s25, s9, 0
s_lshl_b32 s50, s37, 3
v_mov_b32 v{LDBG}, s50
s_lshl_b32 s50, s37, 18
s_add_u32 s32, s14, s50
s_addc_u32 s33, s15, 0
s_mov_b32 s34, {WS_PAIR}
s_mov_b32 s35, 0x20000
v_lshlrev_b32 v{LR8}, 4, v{LANE}
v_mov_b32 v{LONE}, -1
v_mov_b32 v{LONE+1}, -1
v_mov_b32 v{LONE+2}, -1
v_mov_b32 v{LONE+3}, -1
s_lshl_b32 s80, s62, 15
s_lshl_b32 s50, s40, 13
s_add_u32 s80, s80, s50
s_lshl_b32 s51, 1, s48
s_lshl_b32 s48, 8, s48
v_mov_b32 v{LGW}, s51
""")
EARLY = int(optv("early", 1))
if EARLY >= 1: lv(0)
if EARLY >= 2: lk(2)
lwait("Q", "K0"); a("s_barrier")
if EARLY < 1: lv(0)
if EARLY < 2: lk(2)
if EARLY >= 1: lv(1)
lwait("K1"); a("s_barrier")
if EARLY < 1: lv(1)
lk(3)
a("""
s_cmp_lg_u32 s40, 0
s_cbranch_scc1 L_noann
s_mov_b64 exec, 1
""")
a(f"global_atomic_add v{LDBG}, v{LGW}, s[12:13]")
a("s_mov_b64 exec, -1")
a.label("L_noann", flush=False)
lv(2)
lwait("V0"); a("s_barrier")
lk(4)
def clr(pol):
    for w in range(2):
        a(f"s_add_u32 s63, s80, {w*4096}")
        for j in range(3):
            a(f"buffer_store_dwordx4 v[{LONE}:{LONE+3}], v{LR8}, s[32:35], s63 offen offset:{j*1024}{pol}")
        a("s_mov_b64 exec, 0xffff")
        a(f"buffer_store_dwordx4 v[{LONE}:{LONE+3}], v{LR8}, s[32:35], s63 offen offset:3072{pol}")
        a("s_mov_b64 exec, -1")
for t in range(1, 7):
    lwait(f"K{t+1}", f"V{t}")
    if t == CLRT + ACKD: lwait("clr")
    if t == 6: lwait("V7")
    a("s_barrier")
    if t + 2 <= 6: lv(t + 2)
    if t + 4 <= 7: lk(t + 4)
    if t == 4: lv(7)
    if t == CLRT - 1:
        a(f"global_load_dwordx2 v[{LGW}:{LGW+1}], v{LDBG}, s[12:13] sc1"); vq.append("gw")
    if t == CLRT:
        lwait("gw")
        a(f"v_readfirstlane_b32 s50, v{LGW}")
        if FAST:
            a("s_cmp_eq_u32 s50, s48")
            a("s_cbranch_scc0 L_clr_slow")
            clr("")
            a("s_branch L_clr_done")
            a.label("L_clr_slow", flush=False)
        clr(" sc1")
        a.label("L_clr_done", flush=False)
        vq.extend(["clr"] * 8)
    if t == CLRT + ACKD:
        a("s_cmp_lg_u32 s40, 0")
        a("s_cbranch_scc1 L_noann2")
        a("s_mov_b64 exec, 1")
        a(f"global_atomic_add v{LDBG}, v{LV}, s[12:13] offset:4")
        a("s_mov_b64 exec, -1")
        a.label("L_noann2", flush=False)
    if t == TCHT and "notouch" not in flags:
        for w in range(2):
            a(f"s_add_u32 s63, s80, {w*4096}")
            for j in range(4):
                if j == 3: a("s_mov_b64 exec, 0xffff")
                a(f"buffer_load_dwordx4 v[{LPR}:{LPR+3}], v{LR8}, s[32:35], s63 offen offset:{j*1024} sc1{TPOL}")
                vq.append("tch")
            a("s_mov_b64 exec, -1")
lwait("V7")
a("""
s_barrier
s_barrier
""")
if "wb" in flags:
    a("s_barrier")
    a("s_cmp_lg_u32 s40, 0"); a("s_cbranch_scc1 L_lend")
    if "wb1" in flags: a("s_cmp_lg_u32 s62, 0"); a("s_cbranch_scc1 L_lend")
    a("buffer_wbl2 sc1")
    a.label("L_lend", flush=False)
a("s_endpgm")
a("L_compute:")
if LF: a("s_sub_u32 s36, s36, 4")
if "prio" in flags:
    a("s_cmp_lt_u32 s36, 4"); a("s_cbranch_scc1 L_np"); a("s_setprio 1"); a.label("L_np", flush=False)
a(f"""
s_and_b32 s40, s36, 3
s_lshr_b32 s41, s36, 2
s_lshl_b32 s48, 8, s48
s_mov_b32 s44, {f2u(C):#x}
s_mov_b32 s60, {f2u(THR):#x}
s_mov_b32 s61, 0
v_and_b32 v{t0}, 3, v{LANE}
v_bfe_u32 v{t1}, v{LANE}, 2, 3
v_lshrrev_b32 v{t2}, 5, v{LANE}
v_mul_u32_u24 v{t1}, {GRP}, v{t1}
v_lshl_add_u32 v{t1}, v{t0}, 8, v{t1}
v_xor_b32 v{t3}, v{t2}, v{t0}
v_lshl_add_u32 v{t1}, v{t3}, 4, v{t1}
s_mul_i32 s45, s41, {TILE}
s_add_u32 s46, s45, {REG}
v_add_u32 v{KA}, s46, v{t1}
v_add_u32 v{O0}, s45, v{t1}
s_lshr_b32 s50, s40, 1
s_mul_i32 s49, s50, {slot_base(7) - slot_base(6)}
s_and_b32 s50, s40, 1
s_mul_i32 s50, s50, {TILE}
s_add_u32 s49, s49, s50
s_add_u32 s49, s49, {slot_base(6)}
v_add_u32 v{O0+2}, s49, v{t1}
v_xor_b32 v{KA+1}, 32, v{KA}
v_xor_b32 v{O0+1}, 32, v{O0}
v_xor_b32 v{O0+3}, 32, v{O0+2}
s_lshl_b32 s50, s41, 7
s_lshl_b32 s51, s38, 5
s_or_b32 s50, s50, s51
v_bfe_u32 v{t0}, v{LANE}, 2, 2
v_and_b32 v{t1}, 3, v{LANE}
v_bfe_u32 v{t3}, v{LANE}, 4, 1
v_lshl_add_u32 v{M}, v{t2}, 2, v{t0}
v_lshlrev_b32 v{M}, 8, v{M}
v_lshl_add_u32 v{M}, v{t0}, 6, v{M}
v_lshl_add_u32 v{M}, v{t3}, 5, v{M}
v_lshl_add_u32 v{M}, v{t1}, 3, v{M}
v_xor_b32 v{M}, s50, v{M}
s_add_u32 s47, s45, {CH}
v_add_u32 v{VA}, s47, v{M}
v_xor_b32 v{VA+1}, 64, v{VA}
v_xor_b32 v{VA+2}, 0x80, v{VA}
v_xor_b32 v{VA+3}, 0xc0, v{VA}
s_lshl_b32 s80, s62, 3
s_add_u32 s80, s80, s36
s_lshl_b32 s80, s80, 12
s_xor_b32 s85, s36, 4
s_waitcnt lgkmcnt(0)
s_add_u32 s28, s10, s42
s_addc_u32 s29, s11, 0
s_mov_b32 s30, 32768
s_mov_b32 s31, 0x20000
s_lshl_b32 s50, s37, 18
s_add_u32 s32, s14, s50
s_addc_u32 s33, s15, 0
s_mov_b32 s34, {WS_PAIR}
s_mov_b32 s35, 0x20000
""")
for r in range(4, 64): a(f"v_mov_b32 v{O0+r}, 0")
assert TILE % 256 == 0 and CH % 256 == 0 and GRP % 64 == 0
plab = [0]
def flag_prefetch(): pass
def need_chunks(cnt, prefetched=True):
    if cnt is None: return
    lds_wait("Q")
    a("s_barrier")
polls = []
def post_progress(code): pass
def lane16(dst):
    a(f"v_mbcnt_lo_u32_b32 v{dst}, -1, 0")
    a(f"v_mbcnt_hi_u32_b32 v{dst}, -1, v{dst}")
    a(f"v_lshlrev_b32 v{dst}, 4, v{dst}")
def T(j): return TMP + (j % 2) * 2
def e_ops(j): return [(8, f"v_exp_f32 v{T(j)}, v{XB+2*j}"), (8, f"v_exp_f32 v{T(j)+1}, v{XB+2*j+1}")]
def ac_ops(q):
    if q % 4 == 0: ops = [(4, f"v_add_f32 v{LT0}, v{T(q)}, v{T(q)+1}")]
    else: ops = [(4, f"v_add_f32 v{LT0}, v{LT0}, v{T(q)}"), (4, f"v_add_f32 v{LT0}, v{LT0}, v{T(q)+1}")]
    return ops + [(4, f"v_cvt_pk_bf16_f32 v{PB+q}, v{T(q)}, v{T(q)+1}")]
def f_op(i, src): return (4, f"v_fma_f32 v{XB+i}, v{src+i}, s44, -v{M}")
def sm_list(src):
    ops = []
    ops += [f_op(i, src) for i in range(0, 4)] + e_ops(0)
    ops += [f_op(i, src) for i in range(4, 8)] + e_ops(1)
    ops += [f_op(i, src) for i in range(8, 12)] + ac_ops(0)
    ops += [f_op(i, src) for i in range(12, 16)]
    for j in range(2, 8):
        ops += e_ops(j) + ac_ops(j - 1)
        if j - 1 == 3: ops.append((10, ("C1",)))
    ops += ac_ops(7) + [(10, ("C2",))]
    return ops
def spread(ops, nslots, extra=None):
    extra = extra or [0] * nslots
    total = sum(c for c, _ in ops) + sum(extra)
    out = [[] for _ in range(nslots)]
    acc = used = 0.0
    ops = list(ops)
    for i in range(nslots):
        acc += total / nslots; used += extra[i]
        while ops and used + ops[0][0] / 2 <= acc:
            c, o = ops.pop(0); used += c; out[i].append(o)
    out[-1] += [o for _, o in ops]
    return out
extra = [0] * 16
extra[3] += 8; extra[4] += 8
extra[11] += 8
STEADY = spread(sm_list(S0), 16, extra)
for i, sl in enumerate(STEADY):
    for o in sl:
        if isinstance(o, str):
            m_ = re.match(r"v_cvt_pk_bf16_f32 v(\d+)", o)
            if m_:
                q = int(m_.group(1)) - PB
                assert (1 <= i <= 13) if q < 4 else (5 <= i), (q, i)
            if o.startswith("v_fma"): assert i <= 5, i
rare = []
def act(o, ctx):
    if isinstance(o, str): a(o); return
    name = f"{o[0]}{ctx}"
    if ctx == "p":
        if o[0] == "C1": a(f"v_mov_b32 v{LSUM}, v{LT0}")
        else: a(f"v_add_f32 v{LSUM}, v{LSUM}, v{LT0}")
        return
    a(f"v_cmp_lt_f32 vcc, s60, v{LT0}")
    if "xnorare" not in flags: a(f"s_cbranch_vccnz L_rare{name}")
    a.label(f"L_back{name}", flush=False)
    a(f"v_add_f32 v{LSUM}, v{LSUM}, v{LT0}")
    rare.append((o[0], ctx))
fidx = [0]
def kread(x, areg, off):
    f = FR + 4 * (fidx[0] % NF); tag = ("f", fidx[0] % NF); fidx[0] += 1
    a(f"ds_read_b128 v[{f}:{f+3}], v{areg+(x&1)} offset:{off + (x>>1)*64}"); lds_q.append(tag)
def vread(mh, y):
    f = FR + 4 * (fidx[0] % NF); tag = ("f", fidx[0] % NF); fidx[0] += 1
    for e in range(2):
        a(f"ds_read_b64_tr_b16 v[{f+2*e}:{f+2*e+1}], v{VA+y} offset:{mh*4096 + e*2048}"); lds_q.append(tag)
midx = [0]
def mfma(dst, b, first):
    f = FR + 4 * (midx[0] % NF); lds_wait(("f", midx[0] % NF)); midx[0] += 1
    cin = "0" if first else f"v[{dst}:{dst+15}]"
    a(f"v_mfma_f32_32x32x16_bf16 v[{dst}:{dst+15}], v[{f}:{f+3}], v[{b}:{b+3}], {cin}")
PVORD = [(mh, blk) for mh in range(2) for blk in range(4)]
PV7ORD = [(mh, blk) for blk in (3, 2, 1, 0) for mh in range(2)]

need_chunks(1, prefetched=False)
stamp("k0b")
if "cyc" in flags: a("s_memtime s[94:95]"); a("s_waitcnt lgkmcnt(0)")
for s in range(8):
    a(f"ds_read_b128 v[{QF+4*s}:{QF+4*s+3}], v{O0+2+(s&1)} offset:{(s>>1)*64}"); lds_q.append("Q")
for x in range(3): kread(x, O0, 0)
lds_wait("Q"); post_progress(1)
for x in range(8):
    if x == 3: flag_prefetch()
    if x == 5: need_chunks(2)
    if x + 3 < 8: kread(x + 3, O0, 0)
    else: kread(x + 3 - 8, KA, 0)
    mfma(XB, QF + 4 * x, x == 0)
post_progress(2)
stamp("qk0")
def max_ops(src, dst):
    ops = [f"v_max3_f32 v{dst}, v{src}, v{src+1}, v{src+2}", f"v_max3_f32 v{dst+1}, v{src+3}, v{src+4}, v{src+5}"]
    rest = list(range(6, 16))
    for i in range(0, 10, 2):
        m = dst + (i // 2) % 2
        ops.append(f"v_max3_f32 v{m}, v{m}, v{src+rest[i]}, v{src+rest[i+1]}")
    ops += [f"v_max_f32 v{dst}, v{dst}, v{dst+1}", f"v_mov_b32 v{dst+1}, v{dst}",
            f"v_permlane32_swap_b32 v{dst}, v{dst+1}", f"v_max_f32 v{dst}, v{dst}, v{dst+1}"]
    return ops
ntail = len(STEADY[14]) + len(STEADY[15])
full0 = sm_list(XB)
pro_ops = [(4, o) for o in max_ops(XB, TMP)] + [(4, f"v_mul_f32 v{M}, s44, v{TMP}")] + full0[:len(full0) - ntail]
for x in range(8):
    if x == 3: flag_prefetch()
    if x == 5:
        need_chunks(3)
        a(f"v_add_u32 v{KA}, {CH}, v{KA}"); a(f"v_add_u32 v{KA+1}, {CH}, v{KA+1}")
    if x + 3 < 8: kread(x + 3, KA, 0)
    else: vread(*PVORD[x + 3 - 8])
    mfma(S0, QF + 4 * x, x == 0)
    if x >= 2:
        used = 0
        while pro_ops and used + pro_ops[0][0] <= 26:
            c, o = pro_ops.pop(0); used += c; act(o, "p")
post_progress(3)
stamp("qk1")
for c, o in pro_ops: act(o, "p")
stamp("pro")
for r in range(4): a(f"v_mov_b32 v{O0+r}, 0")
a("s_mov_b32 s81, 1")
a("s_mov_b32 s82, 4")
a(f"s_mov_b32 s84, {(-3*CH) & 0xffffffff}")
loop_q = list(lds_q)
def stage(ctx, last):
    for p, (mh, blk) in enumerate(PVORD):
        if p == 3 and not last: flag_prefetch()
        if p == 5:
            if not last: need_chunks("s82")
            else: lds_wait("FL")
        if p + 3 < 8: vread(*PVORD[p + 3])
        elif not last: kread(p + 3 - 8, KA, 0)
        mfma(O0 + 16 * blk, PB + 4 * mh, False)
        if p == 4:
            a("s_and_b32 s50, s81, 3")
            a("s_cmp_eq_u32 s50, 3")
            a(f"s_cselect_b32 s86, s84, {CH}")
            if last: a(f"s_mov_b32 s86, {REG}")
        if p == 5: a(f"v_add_u32 v{VA}, s86, v{VA}"); a(f"v_add_u32 v{VA+1}, s86, v{VA+1}")
        if p == 6: a(f"v_add_u32 v{VA+2}, s86, v{VA+2}"); a(f"v_add_u32 v{VA+3}, s86, v{VA+3}")
        if p == 7 and not last: post_progress("s82")
        for o in (STEADY[14 + p] if p < 2 else STEADY[p - 2]): act(o, ctx)
        if last and p == 1:
            lane16(QF)
            a(f"s_lshl_b32 s50, s37, 3")
            a(f"v_mov_b32 v{QF+6}, s50")
            if "gwearly" in flags: a(f"global_load_dwordx2 v[{QF+4}:{QF+5}], v{QF+6}, s[12:13] sc1")
        if last and p == 2:
            a(f"s_lshl_b32 s50, s36, {MSH}"); a(f"v_add_u32 v{QF+2}, s50, v{QF}")
            a(f"s_lshl_b32 s50, s85, {MSH}"); a(f"v_add_u32 v{QF+3}, s50, v{QF}")
        if last and p == 3:
            a(f"s_lshl_b32 s50, s85, 10"); a(f"s_add_u32 s50, s50, {STATB}"); a(f"v_add_u32 v{QF+8}, s50, v{QF}")
            a(f"s_lshl_b32 s50, s36, 10"); a(f"s_add_u32 s50, s50, {STATB}"); a(f"v_add_u32 v{QF+9}, s50, v{QF}")
        if last and p == 4:
            a(f"v_lshrrev_b32 v{QF+1}, 1, v{QF}")
            a(f"v_and_b32 v{QF+1}, 0xf8, v{QF+1}")
            for kx in range(1, X):
                a(f"s_xor_b32 s55, s62, {kx}")
                a(f"s_lshl_b32 s55, s55, 3")
                a(f"s_add_u32 s55, s55, s36")
                a(f"s_lshl_b32 s{87+kx}, s55, 12")
    if last: return
    for x in range(8):
        if x == 3: flag_prefetch()
        if x == 5:
            need_chunks(None)
            a(f"v_add_u32 v{KA}, s86, v{KA}"); a(f"v_add_u32 v{KA+1}, s86, v{KA+1}")
        if x + 3 < 8: kread(x + 3, KA, 0)
        else: vread(*PVORD[x + 3 - 8])
        mfma(S0, QF + 4 * x, x == 0)
        if x == 7: post_progress("s82")
        for o in STEADY[6 + x]: act(o, ctx)
a.fence()
a.raw(".p2align 6")
a.label("L_loop", flush=False)
if "itst" in flags:
    for i in range(6): a(f"s_mov_b64 s[{66+2*i}:{67+2*i}], s[{68+2*i}:{69+2*i}]")
    a("s_memrealtime s[78:79]"); a("s_waitcnt lgkmcnt(0)")
    nst[0] = 8
stage("l", False)
assert [t for t in lds_q] == loop_q, (lds_q, loop_q)
a("""
s_add_u32 s81, s81, 1
s_cmp_lt_u32 s81, 7
""")
a.fence()
a("s_cbranch_scc1 L_loop")
if "itst" in flags:
    for i in range(6): a(f"s_mov_b64 s[{66+2*i}:{67+2*i}], s[{68+2*i}:{69+2*i}]")
    a("s_memrealtime s[78:79]"); a("s_waitcnt lgkmcnt(0)")
if "npoll" in flags:
    i = nst[0]; nst[0] += 1
    a("s_sub_u32 s92, 0x200000, s96"); a("s_mul_i32 s92, s92, 100")
    a(f"s_add_u32 s{64+2*i}, s92, s64"); a(f"s_addc_u32 s{65+2*i}, 0, s65")
stamp("l1")
stage("e", True)
stamp("pv6")
LN16, RW8, RA0, RA1, GW, DBG, AL = QF, QF + 1, QF + 2, QF + 3, QF + 4, QF + 6, QF + 7
SAW, SAR = QF + 8, QF + 9
PKD = S0
T0, T1, T2, T3 = TMP, TMP + 1, TMP + 2, TMP + 3
for p in range(3): vread(*PV7ORD[p])
for i in range(6, 16):
    for o in STEADY[i]: act(o, "f")
stamp("sm7")
a(f"ds_write_b64 v{SAW}, v[{M}:{M+1}]"); lds_q.append("SW")
for p, (mh, blk) in enumerate(PV7ORD):
    if p + 3 < 8: vread(*PV7ORD[p + 3])
    mfma(O0 + 16 * blk, PB + 4 * mh, False)
    if p == 0:
        lds_wait("SW")
        a("s_barrier")
        a(f"ds_read_b64 v[{LT0}:{LT1}], v{SAR}"); lds_q.append("SR")
        if "gwearly" not in flags: a(f"global_load_dwordx2 v[{QF+4}:{QF+5}], v{QF+6}, s[12:13] sc1")
    if p == 2:
        lds_wait("SR")
        a(f"""
v_max_f32 v{T0}, v{M}, v{LT0}
v_sub_f32 v{AL}, v{M}, v{T0}
v_sub_f32 v{LT0}, v{LT0}, v{T0}
v_exp_f32 v{AL}, v{AL}
v_exp_f32 v{LT0}, v{LT0}
v_mov_b32 v{M}, v{T0}
""")
    if p in (3, 5):
        yb = 3 - (p - 3) // 2
        for i in range(16): a(f"v_mul_f32 v{O0+16*yb+i}, v{O0+16*yb+i}, v{AL}")
    if p in (4, 6) and not F32M:
        yb = 3 - (p - 4) // 2
        i0 = yb - 2; r0 = PKD + i0 * 8
        for i in range(8):
            a(f"v_cvt_pk_bf16_f32 v{r0+i}, v{O0+16*yb+2*i}, v{O0+16*yb+2*i+1}")
        a(f"ds_write_b128 v{RA1}, v[{r0}:{r0+3}] offset:{i0*2048}"); lds_q.append("MW")
        a(f"ds_write_b128 v{RA1}, v[{r0+4}:{r0+7}] offset:{i0*2048+1024}"); lds_q.append("MW")
    if p in (3, 5) and F32M:
        yb = 3 - (p - 3) // 2
        i0 = yb - 2
        for j in range(4):
            a(f"ds_write_b128 v{RA1}, v[{O0+16*yb+4*j}:{O0+16*yb+4*j+3}] offset:{i0*4096+j*1024}"); lds_q.append("MW")
    if p == 7:
        a(f"""
v_mul_f32 v{LSUM}, v{LSUM}, v{AL}
v_fmac_f32 v{LSUM}, v{LT0}, v{LT1}
v_mov_b32 v{LT1}, v{LSUM}
v_min_u32 v{M}, -2, v{M}
v_permlane32_swap_b32 v{LSUM}, v{LT1}
v_add_f32 v{LSUM}, v{LSUM}, v{LT1}
v_min_u32 v{LSUM}, -2, v{LSUM}
""")
stamp("lend")
a("s_waitcnt lgkmcnt(0)"); lds_q.clear()
a("s_barrier")
stamp()
if "cyc" in flags:
    i = nst[0]; nst[0] += 1
    a("s_memtime s[92:93]"); a("s_waitcnt lgkmcnt(0)")
    a(f"s_sub_u32 s92, s92, s94"); a("s_subb_u32 s93, s93, s95")
    a(f"s_add_u32 s{64+2*i}, s92, s64"); a(f"s_addc_u32 s{65+2*i}, s93, s65")
order = [1, 2, 3, 0]
for p in order:
    if F32M:
        r = PKD + p * 8
        a(f"ds_read_b128 v[{r}:{r+3}], v{RA0} offset:{p*2048}")
        a(f"ds_read_b128 v[{r+4}:{r+7}], v{RA0} offset:{p*2048+1024}")
    else:
        r = PKD + p * 4
        a(f"ds_read_b128 v[{r}:{r+3}], v{RA0} offset:{p*1024}")
a(f"""
s_waitcnt vmcnt(0)
s_mov_b32 s58, {SPIN}
v_readfirstlane_b32 s46, v{GW}
v_readfirstlane_b32 s47, v{GW+1}
s_cmp_lg_u32 s47, 8
s_cbranch_scc1 L_gw
L_gw_ok:
s_cmp_eq_u32 s46, s48
""")
PK = QF + 12
def merge_and_publish(pol):
    a(f"buffer_store_dwordx2 v[{M}:{M+1}], v{RW8}, s[32:35], s80 offen offset:3072{pol}")
    for cnt, p in enumerate(order):
        r = PKD + p * 4
        if F32M:
            a(f"s_waitcnt lgkmcnt({6 - 2*cnt})")
            for i in range(8): a(f"v_fma_f32 v{O0+8*p+i}, v{O0+8*p+i}, v{AL}, v{PKD+8*p+i}")
        else: a(f"s_waitcnt lgkmcnt({3 - cnt})")
        for i in range(4 if not F32M else 0):
            a(f"v_lshlrev_b32 v{T0}, 16, v{r+i}")
            a(f"v_and_b32 v{T1}, 0xffff0000, v{r+i}")
            a(f"v_fma_f32 v{O0+8*p+2*i}, v{O0+8*p+2*i}, v{AL}, v{T0}")
            a(f"v_fma_f32 v{O0+8*p+2*i+1}, v{O0+8*p+2*i+1}, v{AL}, v{T1}")
        if p:
            for i in range(4):
                a(f"v_cvt_pk_bf16_f32 v{PK+4*p+i}, v{O0+8*p+2*i}, v{O0+8*p+2*i+1}")
            for i in range(4):
                a(f"v_min_u32 v{PK+4*p+i}, -2, v{PK+4*p+i}")
            a(f"buffer_store_dwordx4 v[{PK+4*p}:{PK+4*p+3}], v{LN16}, s[32:35], s80 offen offset:{(p-1)*1024}{pol}")
if FAST:
    a("s_cbranch_scc0 L_slow")
    merge_and_publish("")
else:
    merge_and_publish(" sc1")
a("L_pub_done:")
if "wb" in flags: a("s_barrier")
stamp()
IN = O0 + 32; ST = FR
a(f"s_mov_b32 s58, {SPIN}")
a("L_poll:")
for k in range(1, X):
    a(f"buffer_load_dwordx2 v[{ST+2*k}:{ST+2*k+1}], v{RW8}, s[32:35], s{87+k} offen offset:3072 sc1")
    a(f"buffer_load_dwordx4 v[{IN+4*(k-1)}:{IN+4*(k-1)+3}], v{LN16}, s[32:35], s{87+k} offen offset:{(k-1)*1024} sc1")
a(f"""
s_sub_u32 s58, s58, 1
s_cmp_eq_u32 s58, 0
s_cbranch_scc1 L_poll_done
s_waitcnt vmcnt(0)
""")
regs = [ST + 2 * k + i for k in range(1, X) for i in range(2)] + [IN + i for i in range(4 * (X - 1))]
a(f"v_max3_u32 v{T0}, v{regs[0]}, v{regs[1]}, v{regs[2]}")
rest = regs[3:]
while rest:
    if len(rest) >= 2: a(f"v_max3_u32 v{T0}, v{T0}, v{rest[0]}, v{rest[1]}"); rest = rest[2:]
    else: a(f"v_max_u32 v{T0}, v{T0}, v{rest[0]}"); rest = []
a(f"""
v_cmp_eq_u32 vcc, -1, v{T0}
s_cbranch_vccnz L_poll
L_poll_done:
s_waitcnt vmcnt(0)
""")
stamp()
a(f"v_max3_f32 v{T0}, v{M}, v{ST+2}, v{ST+4}")
a(f"v_max_f32 v{T0}, v{T0}, v{ST+6}")
a(f"v_sub_f32 v{ST}, v{M}, v{T0}")
for k in range(1, X): a(f"v_sub_f32 v{ST+2*k}, v{ST+2*k}, v{T0}")
for k in range(X): a(f"v_exp_f32 v{ST+2*k}, v{ST+2*k}")
a(f"v_mul_f32 v{T1}, v{ST}, v{LSUM}")
for k in range(1, X): a(f"v_fmac_f32 v{T1}, v{ST+2*k}, v{ST+2*k+1}")
a(f"v_rcp_f32 v{T1}, v{T1}")
for i in range(8): a(f"v_mul_f32 v{O0+i}, v{O0+i}, v{ST}")
for k in range(1, X):
    for i in range(4):
        r = IN + 4 * (k - 1) + i
        a(f"v_lshlrev_b32 v{T2}, 16, v{r}")
        a(f"v_and_b32 v{T3}, 0xffff0000, v{r}")
        a(f"v_fmac_f32 v{O0+2*i}, v{T2}, v{ST+2*k}")
        a(f"v_fmac_f32 v{O0+2*i+1}, v{T3}, v{ST+2*k}")
for i in range(8): a(f"v_mul_f32 v{O0+i}, v{O0+i}, v{T1}")
for i in range(4):
    a(f"v_cvt_pk_bf16_f32 v{PK+i}, v{O0+2*i}, v{O0+2*i+1}")
a(f"""
v_lshlrev_b32 v{T0}, 5, v{RW8}
v_lshrrev_b32 v{T1}, 9, v{LN16}
v_lshl_add_u32 v{T0}, v{T1}, 3, v{T0}
s_lshl_b32 s50, s40, 13
s_lshl_b32 s51, s41, 7
s_add_u32 s50, s50, s51
s_lshl_b32 s51, s38, 5
s_add_u32 s50, s50, s51
buffer_store_dwordx2 v[{PK}:{PK+1}], v{T0}, s[28:31], s50 offen{OPOL}
buffer_store_dwordx2 v[{PK+2}:{PK+3}], v{T0}, s[28:31], s50 offen offset:16{OPOL}
""")
if STAMPS:
    stamp()
    n = min(nst[0], 8)
    a(f"""
s_cmp_lg_u32 s36, {optv("stw", 0)}
s_cbranch_scc1 L_done
s_add_u32 s14, s14, {200<<20}
s_addc_u32 s15, s15, 0
s_lshl_b32 s3, s2, 6
v_mov_b32 v3, s3
""")
    for i in range(16):
        a(f"v_mov_b32 v{4+i}, s{64+min(i, 2*n-2+(i&1))}")
    a("""
s_mov_b64 exec, 1
global_store_dwordx4 v3, v[4:7], s[14:15]
global_store_dwordx4 v3, v[8:11], s[14:15] offset:16
global_store_dwordx4 v3, v[12:15], s[14:15] offset:32
global_store_dwordx4 v3, v[16:19], s[14:15] offset:48
""")
a("L_done:")
a("s_endpgm")
for L, cnt in polls:
    a(f"L_pl{L}:")
    a(f"ds_read_b32 v{FL}, v{LT1}")
    a("s_waitcnt lgkmcnt(0)")
    a(f"v_readfirstlane_b32 s61, v{FL}")
    a(f"s_sub_u32 s96, s96, 1")
    a(f"s_cbranch_scc1 L_ok{L}")
    a(f"s_cmp_ge_u32 s61, {cnt}")
    a(f"s_cbranch_scc1 L_ok{L}")
    if PSLEEP: a(f"s_sleep {PSLEEP}")
    a(f"s_branch L_pl{L}")
a(f"""
L_gw:
s_sub_u32 s58, s58, 1
s_cmp_eq_u32 s58, 0
s_cbranch_scc1 L_gw_ok
s_sleep 2
global_load_dwordx2 v[{GW}:{GW+1}], v{DBG}, s[12:13] sc1
s_waitcnt vmcnt(0)
v_readfirstlane_b32 s46, v{GW}
v_readfirstlane_b32 s47, v{GW+1}
s_cmp_lg_u32 s47, 8
s_cbranch_scc1 L_gw
s_branch L_gw_ok
""")
if FAST:
    a("L_slow:")
    merge_and_publish(" sc1")
    a("s_branch L_pub_done")
for kind, ctx in rare:
    a(f"L_rare{kind}{ctx}:")
    a("s_nop 15")
    for o in max_ops(XB, TMP): a(o)
    a(f"""
v_max_f32 v{TMP}, 0, v{TMP}
v_sub_f32 v{TMP+1}, 0, v{TMP}
v_exp_f32 v{TMP+1}, v{TMP+1}
v_add_f32 v{M}, v{M}, v{TMP}
v_mul_f32 v{LSUM}, v{LSUM}, v{TMP+1}
""")
    for r in range(64): a(f"v_mul_f32 v{O0+r}, v{O0+r}, v{TMP+1}")
    for i in range(16): a(f"v_sub_f32 v{XB+i}, v{XB+i}, v{TMP}")
    nq = 4 if kind == "C1" else 8
    for q in range(nq):
        for _, o in e_ops(q) + ac_ops(q): a(o)
    if kind == "C1":
        for _, o in e_ops(4): a(o)
    a.fence()
    a(f"s_branch L_back{kind}{ctx}")
a.raw(f""".section .rodata,"a"
.p2align 6
.amdhsa_kernel {NAME}
  .amdhsa_next_free_vgpr {NV}
  .amdhsa_next_free_sgpr 98
  .amdhsa_accum_offset {NV}
  .amdhsa_group_segment_fixed_size 0
  .amdhsa_kernarg_size 48
  .amdhsa_user_sgpr_count 2
  .amdhsa_user_sgpr_kernarg_segment_ptr 1
  .amdhsa_system_sgpr_workgroup_id_x 1
.end_amdhsa_kernel""")
print(a.text())
print(f"; NV={NV} LDS={LDS} nops inserted: {a.nops}; steady={[len(s) for s in STEADY]}", file=sys.stderr)
```

```python
import sys, math, struct, re
from asmgen import Asm
flags = set(sys.argv[1:])
def optv(name, d):
    for f in flags:
        if f.startswith(name + "="): return f.split("=", 1)[1]
    return d
X = 4
STAMPS = "stamps" in flags
FAST = "nofast" not in flags
KVPOL = "" if "kvplain" in flags else " nt"
QPOL = " nt" if "qnt" in flags else ""
OPOL = optv("opol", "").replace("+", " ")
TPOL = " nt" if "tnt" in flags else ""
D = 3; NF = 4
THR = float(optv("thr", 1024.0))
GSLEEP = int(optv("gs", 4)); PSLEEP = int(optv("ps", 1)); LPRIO = int(optv("lprio", 1))
SPIN = 0x40000
LF = "lfirst" in flags
LSEL = "s_cmp_ge_u32 s36, 4\ns_cbranch_scc1 L_compute" if LF else "s_cmp_lt_u32 s36, 8\ns_cbranch_scc1 L_compute"
F32M = "f32m" in flags
MSH = 13 if F32M else 12
NAME = "standalone__gqa_softmax__near_ridge_kernel"
GRP = 1088; TILE = 8 * GRP; CH = 2 * TILE; NB = 4; REG = NB * CH
FLAGB = 2 * REG; STATB = FLAGB + 256; LDS = STATB + 8192
def slot_base(n): return (n & 1) * REG + ((n >> 1) % NB) * CH
def q_base(g): return slot_base(6 + (g >> 1)) + (g & 1) * TILE
WS_PAIR = 1 << 18
C = (128 ** -0.5) * math.log2(math.e)
def f2u(x): return struct.unpack("<I", struct.pack("<f", x))[0]

a = Asm()
a.raw(f"""; GQA attention (B8 Hq32 Hkv4 Sq32 Sk2048 D128): 128 query rows x 512 keys per workgroup; 8 compute waves + 4 loader waves.
; @launch grid=(256,1,1) block=(768,1,1) lds={LDS}
.amdgcn_target "amdgcn-amd-amdhsa--gfx950"
.text
.globl {NAME}
.p2align 8
.type {NAME},@function
{NAME}:""")
lds_q = []
def lds_wait(tag):
    idxs = [i for i, t in enumerate(lds_q) if t == tag]
    if not idxs: return
    idx = max(idxs); n = len(lds_q) - 1 - idx
    a(f"s_waitcnt lgkmcnt({min(n,15)})")
    del lds_q[:idx + 1]
nst = [0]
SEL = optv("st", None); SEL = set(SEL.split(",")) if SEL else None
def stamp(name="d"):
    if not STAMPS: return
    if SEL is None and name != "d": return
    if SEL is not None and name not in SEL: return
    i = nst[0]; nst[0] += 1
    if i >= 8: return
    a(f"s_memrealtime s[{64+2*i}:{65+2*i}]")
    a("s_waitcnt lgkmcnt(0)")

QF = 0; O0 = 32; S0 = 96; XB = 112; PB = 128; FR = 136; TMP = 152; KA = 156; VA = 158
M, LSUM, LT0, LT1, FL, VP = 162, 163, 164, 165, 166, 167
NV = 168
LANE = O0 + 40
t0, t1, t2, t3 = O0 + 41, O0 + 42, O0 + 43, O0 + 44

a(f"""
s_cmp_ge_u32 s2, 256
s_cbranch_scc1 L_done
s_load_dwordx8 s[4:11], s[0:1], 0
s_load_dwordx4 s[12:15], s[0:1], 32
""")
if STAMPS:
    a("s_memrealtime s[64:65]"); nst[0] = 1
a(f"""
v_lshrrev_b32 v{t0}, 6, v0
v_and_b32 v{LANE}, 63, v0
v_readfirstlane_b32 s36, v{t0}
s_and_b32 s37, s2, 7
s_lshr_b32 s62, s2, 3
s_lshl_b32 s37, s37, 2
s_lshr_b32 s39, s62, 3
s_add_u32 s37, s37, s39                  ; pair
s_and_b32 s62, s62, 7                    ; sub
s_lshr_b32 s39, s62, 2                   ; rowset
s_and_b32 s38, s62, 3
s_lshl_b32 s42, s37, 16
s_lshl_b32 s43, s39, 15
s_add_u32 s42, s42, s43
s_getreg_b32 s48, hwreg(HW_REG_XCC_ID, 0, 4)
s_lshl_b32 s48, s48, 2
s_mov_b32 s96, 0x200000
{LSEL}
""")
DK, DV, LFA, LV, LN, LR8, LDBG, LGW, LONE, LPR = 1, 2, 3, 4, 5, 6, 7, 8, 12, 16
CLRT = int(optv("clrt", 3)); ACKD = int(optv("ackd", 2)); TCHT = int(optv("tcht", 5)); RAMPN = int(optv("rampn", 4)); LW2 = int(optv("lw", 8))
a(f"""
s_setprio {LPRIO}
v_lshrrev_b32 v{t0}, 4, v{LANE}
v_and_b32 v{t1}, 15, v{LANE}
v_xor_b32 v{t2}, v{t1}, v{t0}
v_lshlrev_b32 v{t2}, 4, v{t2}
v_lshl_add_u32 v{DK}, v{t0}, 8, v{t2}
s_lshl_b32 s43, s37, 19
s_lshl_b32 s45, s38, 17
s_add_u32 s43, s43, s45
s_and_b32 s40, s36, 3
s_lshl_b32 s41, s40, 12
s_mul_i32 s46, s40, {4*GRP}
s_lshr_b32 s47, s40, 1
s_mul_i32 s47, s47, {TILE}
s_and_b32 s49, s40, 1
s_lshl_b32 s49, s49, 12
s_add_u32 s47, s47, s49
s_mov_b32 s18, 32768
s_mov_b32 s19, 0x20000
s_mov_b32 s22, 131072
s_mov_b32 s23, 0x20000
s_waitcnt lgkmcnt(0)
s_add_u32 s20, s6, s43
s_addc_u32 s21, s7, 0
s_add_u32 s16, s4, s42
s_addc_u32 s17, s5, 0
""")
def kq(srd, sl, lconst, sg, gconst, pol):
    for g in range(4):
        a(f"s_add_u32 m0, {sl}, {lconst + g*GRP}")
        a(f"s_add_u32 s59, {sg}, {gconst + g*1024}")
        a(f"buffer_load_dwordx4 v{DK}, {srd}, s59 offen{pol} lds")
def vq_(sl, sg):
    a(f"s_mov_b32 m0, {sl}")
    for g in range(4):
        a(f"buffer_load_dwordx4 v{DV}, s[24:27], {sg} offen offset:{g*1024}{KVPOL} lds")
vq = []
def lk(t):
    n = 0 if t == 0 else 2 * t - 1
    kq("s[20:23]", "s46", slot_base(n), "s41", t * 16384, KVPOL); vq.extend([f"K{t}"] * 4)
def lv(t):
    n = 2 + 2 * t if t < 7 else 15
    a(f"s_add_u32 s86, s47, {slot_base(n)}")
    a(f"s_add_u32 s87, s41, {t * 16384}")
    vq_("s86", "s87"); vq.extend([f"V{t}"] * 4)
def lwait(*tags):
    idx = max((i for i, t in enumerate(vq) if t in tags), default=None)
    if idx is None: return
    a(f"s_waitcnt vmcnt({len(vq) - 1 - idx})"); del vq[:idx + 1]
lk(0)
kq("s[16:19]", "s46", slot_base(6), "s41", 0, QPOL); vq.extend(["Q"] * 4)
kq("s[16:19]", "s46", slot_base(7), "s41", 16384, QPOL); vq.extend(["Q"] * 4)
lk(1)
a(f"""
v_mov_b32 v{LV}, 1
v_lshlrev_b32 v{t2}, 2, v{t0}
v_xor_b32 v{t2}, v{t1}, v{t2}
v_lshlrev_b32 v{t2}, 4, v{t2}
v_lshl_add_u32 v{DV}, v{t0}, 8, v{t2}
s_mov_b32 s26, 131072
s_mov_b32 s27, 0x20000
s_add_u32 s24, s8, s43
s_addc_u32 s25, s9, 0
s_lshl_b32 s50, s37, 3
v_mov_b32 v{LDBG}, s50
s_lshl_b32 s50, s37, 18
s_add_u32 s32, s14, s50
s_addc_u32 s33, s15, 0
s_mov_b32 s34, {WS_PAIR}
s_mov_b32 s35, 0x20000
v_lshlrev_b32 v{LR8}, 4, v{LANE}
v_mov_b32 v{LONE}, -1
v_mov_b32 v{LONE+1}, -1
v_mov_b32 v{LONE+2}, -1
v_mov_b32 v{LONE+3}, -1
s_lshl_b32 s80, s62, 15
s_lshl_b32 s50, s40, 13
s_add_u32 s80, s80, s50
s_lshl_b32 s51, 1, s48
s_lshl_b32 s48, 8, s48
v_mov_b32 v{LGW}, s51
""")
EARLY = int(optv("early", 1))
if EARLY >= 1: lv(0)
if EARLY >= 2: lk(2)
lwait("Q", "K0"); a("s_barrier")
if EARLY < 1: lv(0)
if EARLY < 2: lk(2)
if EARLY >= 1: lv(1)
lwait("K1", "V0"); a("s_barrier")
if EARLY < 1: lv(1)
lk(3)
a("""
s_cmp_lg_u32 s40, 0
s_cbranch_scc1 L_noann
s_mov_b64 exec, 1
""")
a(f"global_atomic_add v{LDBG}, v{LGW}, s[12:13]")
a("s_mov_b64 exec, -1")
a.label("L_noann", flush=False)
lv(2)
lk(4)
def clr(pol):
    for w in range(2 if "xnoex" not in flags else 0):
        a(f"s_add_u32 s63, s80, {w*4096}")
        for j in range(3):
            a(f"buffer_store_dwordx4 v[{LONE}:{LONE+3}], v{LR8}, s[32:35], s63 offen offset:{j*1024}{pol}")
        a("s_mov_b64 exec, 0xffff")
        a(f"buffer_store_dwordx4 v[{LONE}:{LONE+3}], v{LR8}, s[32:35], s63 offen offset:3072{pol}")
        a("s_mov_b64 exec, -1")
for t in range(1, 7):
    lwait(f"K{t+1}", f"V{t}")
    if t == CLRT + ACKD: lwait("clr")
    if t == 6: lwait("V7")
    a("s_barrier")
    if t + 2 <= 6: lv(t + 2)
    if t + 4 <= 7: lk(t + 4)
    if t == 4: lv(7)
    if t == CLRT - 1:
        a(f"global_load_dwordx2 v[{LGW}:{LGW+1}], v{LDBG}, s[12:13] sc1"); vq.append("gw")
    if t == CLRT:
        lwait("gw")
        a(f"v_readfirstlane_b32 s50, v{LGW}")
        if FAST:
            a("s_cmp_eq_u32 s50, s48")
            a("s_cbranch_scc0 L_clr_slow")
            clr("")
            a("s_branch L_clr_done")
            a.label("L_clr_slow", flush=False)
        clr(" sc1")
        a.label("L_clr_done", flush=False)
        vq.extend(["clr"] * 8)
    if t == CLRT + ACKD:
        a("s_cmp_lg_u32 s40, 0")
        a("s_cbranch_scc1 L_noann2")
        a("s_mov_b64 exec, 1")
        a(f"global_atomic_add v{LDBG}, v{LV}, s[12:13] offset:4")
        a("s_mov_b64 exec, -1")
        a.label("L_noann2", flush=False)
    if t == TCHT and "notouch" not in flags:
        for w in range(2):
            a(f"s_add_u32 s63, s80, {w*4096}")
            for j in range(4):
                if j == 3: a("s_mov_b64 exec, 0xffff")
                a(f"buffer_load_dwordx4 v[{LPR}:{LPR+3}], v{LR8}, s[32:35], s63 offen offset:{j*1024} sc1{TPOL}")
                vq.append("tch")
            a("s_mov_b64 exec, -1")
lwait("V7")
a("""
s_barrier
s_barrier
""")
if "wb" in flags:
    a("s_barrier")
    a("s_cmp_lg_u32 s40, 0"); a("s_cbranch_scc1 L_lend")
    if "wb1" in flags: a("s_cmp_lg_u32 s62, 0"); a("s_cbranch_scc1 L_lend")
    a("buffer_wbl2 sc1")
    a.label("L_lend", flush=False)
a("s_endpgm")
a("L_compute:")
if LF: a("s_sub_u32 s36, s36, 4")
if "prio" in flags:
    a("s_cmp_lt_u32 s36, 4"); a("s_cbranch_scc1 L_np"); a("s_setprio 1"); a.label("L_np", flush=False)
a(f"""
s_and_b32 s40, s36, 3
s_lshr_b32 s41, s36, 2
s_lshl_b32 s48, 8, s48
s_mov_b32 s44, {f2u(C):#x}
s_mov_b32 s60, {f2u(THR):#x}
s_mov_b32 s61, 0
v_and_b32 v{t0}, 3, v{LANE}
v_bfe_u32 v{t1}, v{LANE}, 2, 3
v_lshrrev_b32 v{t2}, 5, v{LANE}
v_mul_u32_u24 v{t1}, {GRP}, v{t1}
v_lshl_add_u32 v{t1}, v{t0}, 8, v{t1}
v_xor_b32 v{t3}, v{t2}, v{t0}
v_lshl_add_u32 v{t1}, v{t3}, 4, v{t1}
s_mul_i32 s45, s41, {TILE}
s_add_u32 s46, s45, {REG}
v_add_u32 v{KA}, s46, v{t1}
v_add_u32 v{O0}, s45, v{t1}
s_lshr_b32 s50, s40, 1
s_mul_i32 s49, s50, {slot_base(7) - slot_base(6)}
s_and_b32 s50, s40, 1
s_mul_i32 s50, s50, {TILE}
s_add_u32 s49, s49, s50
s_add_u32 s49, s49, {slot_base(6)}
v_add_u32 v{O0+2}, s49, v{t1}
v_xor_b32 v{KA+1}, 32, v{KA}
v_xor_b32 v{O0+1}, 32, v{O0}
v_xor_b32 v{O0+3}, 32, v{O0+2}
s_lshl_b32 s50, s41, 7
s_lshl_b32 s51, s38, 5
s_or_b32 s50, s50, s51
v_bfe_u32 v{t0}, v{LANE}, 2, 2
v_and_b32 v{t1}, 3, v{LANE}
v_bfe_u32 v{t3}, v{LANE}, 4, 1
v_lshl_add_u32 v{M}, v{t2}, 2, v{t0}
v_lshlrev_b32 v{M}, 8, v{M}
v_lshl_add_u32 v{M}, v{t0}, 6, v{M}
v_lshl_add_u32 v{M}, v{t3}, 5, v{M}
v_lshl_add_u32 v{M}, v{t1}, 3, v{M}
v_xor_b32 v{M}, s50, v{M}
s_add_u32 s47, s45, {CH}
v_add_u32 v{VA}, s47, v{M}
v_xor_b32 v{VA+1}, 64, v{VA}
v_xor_b32 v{VA+2}, 0x80, v{VA}
v_xor_b32 v{VA+3}, 0xc0, v{VA}
s_lshl_b32 s80, s62, 3
s_add_u32 s80, s80, s36
s_lshl_b32 s80, s80, 12
s_xor_b32 s85, s36, 4
s_waitcnt lgkmcnt(0)
s_add_u32 s28, s10, s42
s_addc_u32 s29, s11, 0
s_mov_b32 s30, 32768
s_mov_b32 s31, 0x20000
s_lshl_b32 s50, s37, 18
s_add_u32 s32, s14, s50
s_addc_u32 s33, s15, 0
s_mov_b32 s34, {WS_PAIR}
s_mov_b32 s35, 0x20000
""")
for r in range(4, 64): a(f"v_mov_b32 v{O0+r}, 0")
assert TILE % 256 == 0 and CH % 256 == 0 and GRP % 64 == 0
plab = [0]
def flag_prefetch(): pass
def need_chunks(cnt, prefetched=True):
    if cnt is None: return
    lds_wait("Q")
    a("s_barrier")
polls = []
def post_progress(code): pass
def lane16(dst):
    a(f"v_mbcnt_lo_u32_b32 v{dst}, -1, 0")
    a(f"v_mbcnt_hi_u32_b32 v{dst}, -1, v{dst}")
    a(f"v_lshlrev_b32 v{dst}, 4, v{dst}")
def T(j): return TMP + (j % 2) * 2
def e_ops(j): return [(8, f"v_exp_f32 v{T(j)}, v{XB+2*j}"), (8, f"v_exp_f32 v{T(j)+1}, v{XB+2*j+1}")]
def ac_ops(q):
    if q % 4 == 0: ops = [(4, f"v_add_f32 v{LT0}, v{T(q)}, v{T(q)+1}")]
    else: ops = [(4, f"v_add_f32 v{LT0}, v{LT0}, v{T(q)}"), (4, f"v_add_f32 v{LT0}, v{LT0}, v{T(q)+1}")]
    return ops + [(4, f"v_cvt_pk_bf16_f32 v{PB+q}, v{T(q)}, v{T(q)+1}")]
def f_op(i, src): return (4, f"v_fma_f32 v{XB+i}, v{src+i}, s44, -v{M}")
def sm_list(src):
    ops = []
    ops += [f_op(i, src) for i in range(0, 4)] + e_ops(0)
    ops += [f_op(i, src) for i in range(4, 8)] + e_ops(1)
    ops += [f_op(i, src) for i in range(8, 12)] + ac_ops(0)
    ops += [f_op(i, src) for i in range(12, 16)]
    for j in range(2, 8):
        ops += e_ops(j) + ac_ops(j - 1)
        if j - 1 == 3: ops.append((10, ("C1",)))
    ops += ac_ops(7) + [(10, ("C2",))]
    return ops
def spread(ops, nslots, extra=None):
    extra = extra or [0] * nslots
    total = sum(c for c, _ in ops) + sum(extra)
    out = [[] for _ in range(nslots)]
    acc = used = 0.0
    ops = list(ops)
    for i in range(nslots):
        acc += total / nslots; used += extra[i]
        while ops and used + ops[0][0] / 2 <= acc:
            c, o = ops.pop(0); used += c; out[i].append(o)
    out[-1] += [o for _, o in ops]
    return out
extra = [0] * 16
extra[3] += 8; extra[4] += 8
extra[11] += 8
STEADY = spread(sm_list(S0), 16, extra)
for i, sl in enumerate(STEADY):
    for o in sl:
        if isinstance(o, str):
            m_ = re.match(r"v_cvt_pk_bf16_f32 v(\d+)", o)
            if m_:
                q = int(m_.group(1)) - PB
                assert (1 <= i <= 13) if q < 4 else (5 <= i), (q, i)
            if o.startswith("v_fma"): assert i <= 5, i
rare = []
def act(o, ctx):
    if isinstance(o, str): a(o); return
    name = f"{o[0]}{ctx}"
    if ctx == "p":
        if o[0] == "C1": a(f"v_mov_b32 v{LSUM}, v{LT0}")
        else: a(f"v_add_f32 v{LSUM}, v{LSUM}, v{LT0}")
        return
    a(f"v_cmp_lt_f32 vcc, s60, v{LT0}")
    if "xnorare" not in flags: a(f"s_cbranch_vccnz L_rare{name}")
    a.label(f"L_back{name}", flush=False)
    a(f"v_add_f32 v{LSUM}, v{LSUM}, v{LT0}")
    rare.append((o[0], ctx))
fidx = [0]
def kread(x, areg, off):
    f = FR + 4 * (fidx[0] % NF); tag = ("f", fidx[0] % NF); fidx[0] += 1
    a(f"ds_read_b128 v[{f}:{f+3}], v{areg+(x&1)} offset:{off + (x>>1)*64}"); lds_q.append(tag)
def vread(mh, y):
    f = FR + 4 * (fidx[0] % NF); tag = ("f", fidx[0] % NF); fidx[0] += 1
    for e in range(2):
        a(f"ds_read_b64_tr_b16 v[{f+2*e}:{f+2*e+1}], v{VA+y} offset:{mh*4096 + e*2048}"); lds_q.append(tag)
midx = [0]
def mfma(dst, b, first):
    f = FR + 4 * (midx[0] % NF); lds_wait(("f", midx[0] % NF)); midx[0] += 1
    cin = "0" if first else f"v[{dst}:{dst+15}]"
    a(f"v_mfma_f32_32x32x16_bf16 v[{dst}:{dst+15}], v[{f}:{f+3}], v[{b}:{b+3}], {cin}")
PVORD = [(mh, blk) for mh in range(2) for blk in range(4)]
PV7ORD = [(mh, blk) for blk in (3, 2, 1, 0) for mh in range(2)]

need_chunks(1, prefetched=False)
stamp("k0b")
if "cyc" in flags: a("s_memtime s[94:95]"); a("s_waitcnt lgkmcnt(0)")
for s in range(8):
    a(f"ds_read_b128 v[{QF+4*s}:{QF+4*s+3}], v{O0+2+(s&1)} offset:{(s>>1)*64}"); lds_q.append("Q")
for x in range(3): kread(x, O0, 0)
lds_wait("Q"); post_progress(1)
for x in range(8):
    if x == 3: flag_prefetch()
    if x == 5: need_chunks(2)
    if x + 3 < 8: kread(x + 3, O0, 0)
    else: kread(x + 3 - 8, KA, 0)
    mfma(S0, QF + 4 * x, x == 0)
stamp("qk0")
def max_ops(src, dst):
    ops = [f"v_max3_f32 v{dst}, v{src}, v{src+1}, v{src+2}", f"v_max3_f32 v{dst+1}, v{src+3}, v{src+4}, v{src+5}"]
    rest = list(range(6, 16))
    for i in range(0, 10, 2):
        m = dst + (i // 2) % 2
        ops.append(f"v_max3_f32 v{m}, v{m}, v{src+rest[i]}, v{src+rest[i+1]}")
    ops += [f"v_max_f32 v{dst}, v{dst}, v{dst+1}", f"v_mov_b32 v{dst+1}, v{dst}",
            f"v_permlane32_swap_b32 v{dst}, v{dst+1}", f"v_max_f32 v{dst}, v{dst}, v{dst+1}"]
    return ops
for r in range(4): a(f"v_mov_b32 v{O0+r}, 0")
a(f"v_mov_b32 v{LSUM}, 0")
a("s_mov_b32 s81, 0")
a(f"s_mov_b32 s84, {(-3*CH) & 0xffffffff}")
a(f"s_mov_b32 s86, {CH}")
for o in max_ops(S0, TMP): a(o)
a(f"v_mul_f32 v{M}, s44, v{TMP}")
for i in range(6):
    for o in STEADY[i]: act(o, "p")
stamp("pro")
entry_q = list(lds_q)
a.fence()
a("s_branch L_loop_qk")
lds_q[:] = [("f", (fidx[0] - 3 + 8 + i) % NF) for i in range(3) for _ in range(2)]
loop_q = list(lds_q)
def stage(ctx, last):
    for p, (mh, blk) in enumerate(PVORD):
        if p == 3 and not last: flag_prefetch()
        if p == 5:
            if not last: need_chunks("s82")
            else: lds_wait("FL")
        if p + 3 < 8: vread(*PVORD[p + 3])
        elif not last: kread(p + 3 - 8, KA, 0)
        mfma(O0 + 16 * blk, PB + 4 * mh, False)
        if p == 4:
            a("s_and_b32 s50, s81, 3")
            a("s_cmp_eq_u32 s50, 3")
            a(f"s_cselect_b32 s86, s84, {CH}")
            if last: a(f"s_mov_b32 s86, {REG}")
        if p == 5: a(f"v_add_u32 v{VA}, s86, v{VA}"); a(f"v_add_u32 v{VA+1}, s86, v{VA+1}")
        if p == 6: a(f"v_add_u32 v{VA+2}, s86, v{VA+2}"); a(f"v_add_u32 v{VA+3}, s86, v{VA+3}")
        if p == 7 and not last: post_progress("s82")
        for o in (STEADY[14 + p] if p < 2 else STEADY[p - 2]): act(o, ctx)
        if last and p == 1:
            lane16(QF)
            a(f"s_lshl_b32 s50, s37, 3")
            a(f"v_mov_b32 v{QF+6}, s50")
            if "gwearly" in flags: a(f"global_load_dwordx2 v[{QF+4}:{QF+5}], v{QF+6}, s[12:13] sc1")
        if last and p == 2:
            a(f"s_lshl_b32 s50, s36, {MSH}"); a(f"v_add_u32 v{QF+2}, s50, v{QF}")
            a(f"s_lshl_b32 s50, s85, {MSH}"); a(f"v_add_u32 v{QF+3}, s50, v{QF}")
        if last and p == 3:
            a(f"s_lshl_b32 s50, s85, 10"); a(f"s_add_u32 s50, s50, {STATB}"); a(f"v_add_u32 v{QF+8}, s50, v{QF}")
            a(f"s_lshl_b32 s50, s36, 10"); a(f"s_add_u32 s50, s50, {STATB}"); a(f"v_add_u32 v{QF+9}, s50, v{QF}")
        if last and p == 4:
            a(f"v_lshrrev_b32 v{QF+1}, 1, v{QF}")
            a(f"v_and_b32 v{QF+1}, 0xf8, v{QF+1}")
            for kx in range(1, X):
                a(f"s_xor_b32 s55, s62, {kx}")
                a(f"s_lshl_b32 s55, s55, 3")
                a(f"s_add_u32 s55, s55, s36")
                a(f"s_lshl_b32 s{87+kx}, s55, 12")
    if last: return
    assert lds_q == entry_q, (lds_q, entry_q)
    a.label("L_loop_qk", flush=False)
    for x in range(8):
        if x == 3: flag_prefetch()
        if x == 5:
            need_chunks(None)
            a(f"v_add_u32 v{KA}, s86, v{KA}"); a(f"v_add_u32 v{KA+1}, s86, v{KA+1}")
        if x + 3 < 8: kread(x + 3, KA, 0)
        else: vread(*PVORD[x + 3 - 8])
        mfma(S0, QF + 4 * x, x == 0)
        if x == 7: post_progress("s82")
        for o in STEADY[6 + x]: act(o, ctx)
a.fence()
a.raw(".p2align 6")
a.label("L_loop", flush=False)
if "itst" in flags:
    for i in range(6): a(f"s_mov_b64 s[{66+2*i}:{67+2*i}], s[{68+2*i}:{69+2*i}]")
    a("s_memrealtime s[78:79]"); a("s_waitcnt lgkmcnt(0)")
    nst[0] = 8
stage("l", False)
assert [t for t in lds_q] == loop_q, (lds_q, loop_q)
a("""
s_add_u32 s81, s81, 1
s_cmp_lt_u32 s81, 7
""")
a.fence()
a("s_cbranch_scc1 L_loop")
if "itst" in flags:
    for i in range(6): a(f"s_mov_b64 s[{66+2*i}:{67+2*i}], s[{68+2*i}:{69+2*i}]")
    a("s_memrealtime s[78:79]"); a("s_waitcnt lgkmcnt(0)")
if "npoll" in flags:
    i = nst[0]; nst[0] += 1
    a("s_sub_u32 s92, 0x200000, s96"); a("s_mul_i32 s92, s92, 100")
    a(f"s_add_u32 s{64+2*i}, s92, s64"); a(f"s_addc_u32 s{65+2*i}, 0, s65")
stamp("l1")
stage("e", True)
stamp("pv6")
LN16, RW8, RA0, RA1, GW, DBG, AL = QF, QF + 1, QF + 2, QF + 3, QF + 4, QF + 6, QF + 7
SAW, SAR = QF + 8, QF + 9
PKD = S0
T0, T1, T2, T3 = TMP, TMP + 1, TMP + 2, TMP + 3
for p in range(3): vread(*PV7ORD[p])
for i in range(6, 16):
    for o in STEADY[i]: act(o, "f")
stamp("sm7")
a(f"ds_write_b64 v{SAW}, v[{M}:{M+1}]"); lds_q.append("SW")
for p, (mh, blk) in enumerate(PV7ORD):
    if p + 3 < 8: vread(*PV7ORD[p + 3])
    mfma(O0 + 16 * blk, PB + 4 * mh, False)
    if p == 0:
        lds_wait("SW")
        a("s_barrier")
        a(f"ds_read_b64 v[{LT0}:{LT1}], v{SAR}"); lds_q.append("SR")
        if "gwearly" not in flags: a(f"global_load_dwordx2 v[{QF+4}:{QF+5}], v{QF+6}, s[12:13] sc1")
    if p == 2:
        lds_wait("SR")
        a(f"""
v_max_f32 v{T0}, v{M}, v{LT0}
v_sub_f32 v{AL}, v{M}, v{T0}
v_sub_f32 v{LT0}, v{LT0}, v{T0}
v_exp_f32 v{AL}, v{AL}
v_exp_f32 v{LT0}, v{LT0}
v_mov_b32 v{M}, v{T0}
""")
    if p in (3, 5):
        yb = 3 - (p - 3) // 2
        for i in range(16): a(f"v_mul_f32 v{O0+16*yb+i}, v{O0+16*yb+i}, v{AL}")
    if p in (4, 6) and not F32M:
        yb = 3 - (p - 4) // 2
        i0 = yb - 2; r0 = PKD + i0 * 8
        for i in range(8):
            a(f"v_cvt_pk_bf16_f32 v{r0+i}, v{O0+16*yb+2*i}, v{O0+16*yb+2*i+1}")
        a(f"ds_write_b128 v{RA1}, v[{r0}:{r0+3}] offset:{i0*2048}"); lds_q.append("MW")
        a(f"ds_write_b128 v{RA1}, v[{r0+4}:{r0+7}] offset:{i0*2048+1024}"); lds_q.append("MW")
    if p in (3, 5) and F32M:
        yb = 3 - (p - 3) // 2
        i0 = yb - 2
        for j in range(4):
            a(f"ds_write_b128 v{RA1}, v[{O0+16*yb+4*j}:{O0+16*yb+4*j+3}] offset:{i0*4096+j*1024}"); lds_q.append("MW")
    if p == 7:
        a(f"""
v_mul_f32 v{LSUM}, v{LSUM}, v{AL}
v_fmac_f32 v{LSUM}, v{LT0}, v{LT1}
v_mov_b32 v{LT1}, v{LSUM}
v_min_u32 v{M}, -2, v{M}
v_permlane32_swap_b32 v{LSUM}, v{LT1}
v_add_f32 v{LSUM}, v{LSUM}, v{LT1}
v_min_u32 v{LSUM}, -2, v{LSUM}
""")
stamp("lend")
a("s_waitcnt lgkmcnt(0)"); lds_q.clear()
a("s_barrier")
stamp()
if "cyc" in flags:
    i = nst[0]; nst[0] += 1
    a("s_memtime s[92:93]"); a("s_waitcnt lgkmcnt(0)")
    a(f"s_sub_u32 s92, s92, s94"); a("s_subb_u32 s93, s93, s95")
    a(f"s_add_u32 s{64+2*i}, s92, s64"); a(f"s_addc_u32 s{65+2*i}, s93, s65")
order = [1, 2, 3, 0]
for p in order:
    if F32M:
        r = PKD + p * 8
        a(f"ds_read_b128 v[{r}:{r+3}], v{RA0} offset:{p*2048}")
        a(f"ds_read_b128 v[{r+4}:{r+7}], v{RA0} offset:{p*2048+1024}")
    else:
        r = PKD + p * 4
        a(f"ds_read_b128 v[{r}:{r+3}], v{RA0} offset:{p*1024}")
a(f"""
s_waitcnt vmcnt(0)
s_mov_b32 s58, {SPIN}
v_readfirstlane_b32 s46, v{GW}
v_readfirstlane_b32 s47, v{GW+1}
s_cmp_lg_u32 s47, 8
s_cbranch_scc1 L_gw
L_gw_ok:
s_cmp_eq_u32 s46, s48
""")
PK = QF + 12
def merge_and_publish(pol):
    a(f"buffer_store_dwordx2 v[{M}:{M+1}], v{RW8}, s[32:35], s80 offen offset:3072{pol}")
    for cnt, p in enumerate(order):
        r = PKD + p * 4
        if F32M:
            a(f"s_waitcnt lgkmcnt({6 - 2*cnt})")
            for i in range(8): a(f"v_fma_f32 v{O0+8*p+i}, v{O0+8*p+i}, v{AL}, v{PKD+8*p+i}")
        else: a(f"s_waitcnt lgkmcnt({3 - cnt})")
        for i in range(4 if not F32M else 0):
            a(f"v_lshlrev_b32 v{T0}, 16, v{r+i}")
            a(f"v_and_b32 v{T1}, 0xffff0000, v{r+i}")
            a(f"v_fma_f32 v{O0+8*p+2*i}, v{O0+8*p+2*i}, v{AL}, v{T0}")
            a(f"v_fma_f32 v{O0+8*p+2*i+1}, v{O0+8*p+2*i+1}, v{AL}, v{T1}")
        if p:
            for i in range(4):
                a(f"v_cvt_pk_bf16_f32 v{PK+4*p+i}, v{O0+8*p+2*i}, v{O0+8*p+2*i+1}")
            for i in range(4):
                a(f"v_min_u32 v{PK+4*p+i}, -2, v{PK+4*p+i}")
            if "xnoex" not in flags: a(f"buffer_store_dwordx4 v[{PK+4*p}:{PK+4*p+3}], v{LN16}, s[32:35], s80 offen offset:{(p-1)*1024}{pol}")
if FAST:
    a("s_cbranch_scc0 L_slow")
    merge_and_publish("")
else:
    merge_and_publish(" sc1")
a("L_pub_done:")
if "wb" in flags: a("s_barrier")
stamp()
IN = O0 + 32; ST = FR
a(f"s_mov_b32 s58, {SPIN}")
if "xnoex" in flags or "xnopoll" in flags: a("s_branch L_poll_done")
a("L_poll:")
for k in range(1, X):
    a(f"buffer_load_dwordx2 v[{ST+2*k}:{ST+2*k+1}], v{RW8}, s[32:35], s{87+k} offen offset:3072 sc1")
    a(f"buffer_load_dwordx4 v[{IN+4*(k-1)}:{IN+4*(k-1)+3}], v{LN16}, s[32:35], s{87+k} offen offset:{(k-1)*1024} sc1")
a(f"""
s_sub_u32 s58, s58, 1
s_cmp_eq_u32 s58, 0
s_cbranch_scc1 L_poll_done
s_waitcnt vmcnt(0)
""")
regs = [ST + 2 * k + i for k in range(1, X) for i in range(2)] + [IN + i for i in range(4 * (X - 1))]
a(f"v_max3_u32 v{T0}, v{regs[0]}, v{regs[1]}, v{regs[2]}")
rest = regs[3:]
while rest:
    if len(rest) >= 2: a(f"v_max3_u32 v{T0}, v{T0}, v{rest[0]}, v{rest[1]}"); rest = rest[2:]
    else: a(f"v_max_u32 v{T0}, v{T0}, v{rest[0]}"); rest = []
a(f"""
v_cmp_eq_u32 vcc, -1, v{T0}
s_cbranch_vccnz L_poll
L_poll_done:
s_waitcnt vmcnt(0)
""")
stamp()
a(f"v_max3_f32 v{T0}, v{M}, v{ST+2}, v{ST+4}")
a(f"v_max_f32 v{T0}, v{T0}, v{ST+6}")
a(f"v_sub_f32 v{ST}, v{M}, v{T0}")
for k in range(1, X): a(f"v_sub_f32 v{ST+2*k}, v{ST+2*k}, v{T0}")
for k in range(X): a(f"v_exp_f32 v{ST+2*k}, v{ST+2*k}")
a(f"v_mul_f32 v{T1}, v{ST}, v{LSUM}")
for k in range(1, X): a(f"v_fmac_f32 v{T1}, v{ST+2*k}, v{ST+2*k+1}")
a(f"v_rcp_f32 v{T1}, v{T1}")
for i in range(8): a(f"v_mul_f32 v{O0+i}, v{O0+i}, v{ST}")
for k in range(1, X):
    for i in range(4):
        r = IN + 4 * (k - 1) + i
        a(f"v_lshlrev_b32 v{T2}, 16, v{r}")
        a(f"v_and_b32 v{T3}, 0xffff0000, v{r}")
        a(f"v_fmac_f32 v{O0+2*i}, v{T2}, v{ST+2*k}")
        a(f"v_fmac_f32 v{O0+2*i+1}, v{T3}, v{ST+2*k}")
for i in range(8): a(f"v_mul_f32 v{O0+i}, v{O0+i}, v{T1}")
for i in range(4):
    a(f"v_cvt_pk_bf16_f32 v{PK+i}, v{O0+2*i}, v{O0+2*i+1}")
a(f"""
v_lshlrev_b32 v{T0}, 5, v{RW8}
v_lshrrev_b32 v{T1}, 9, v{LN16}
v_lshl_add_u32 v{T0}, v{T1}, 3, v{T0}
s_lshl_b32 s50, s40, 13
s_lshl_b32 s51, s41, 7
s_add_u32 s50, s50, s51
s_lshl_b32 s51, s38, 5
s_add_u32 s50, s50, s51
buffer_store_dwordx2 v[{PK}:{PK+1}], v{T0}, s[28:31], s50 offen{OPOL}
buffer_store_dwordx2 v[{PK+2}:{PK+3}], v{T0}, s[28:31], s50 offen offset:16{OPOL}
""")
if STAMPS:
    stamp()
    n = min(nst[0], 8)
    a(f"""
s_cmp_lg_u32 s36, {optv("stw", 0)}
s_cbranch_scc1 L_done
s_add_u32 s14, s14, {200<<20}
s_addc_u32 s15, s15, 0
s_lshl_b32 s3, s2, 6
v_mov_b32 v3, s3
""")
    for i in range(16):
        a(f"v_mov_b32 v{4+i}, s{64+min(i, 2*n-2+(i&1))}")
    a("""
s_mov_b64 exec, 1
global_store_dwordx4 v3, v[4:7], s[14:15]
global_store_dwordx4 v3, v[8:11], s[14:15] offset:16
global_store_dwordx4 v3, v[12:15], s[14:15] offset:32
global_store_dwordx4 v3, v[16:19], s[14:15] offset:48
""")
a("L_done:")
a("s_endpgm")
for L, cnt in polls:
    a(f"L_pl{L}:")
    a(f"ds_read_b32 v{FL}, v{LT1}")
    a("s_waitcnt lgkmcnt(0)")
    a(f"v_readfirstlane_b32 s61, v{FL}")
    a(f"s_sub_u32 s96, s96, 1")
    a(f"s_cbranch_scc1 L_ok{L}")
    a(f"s_cmp_ge_u32 s61, {cnt}")
    a(f"s_cbranch_scc1 L_ok{L}")
    if PSLEEP: a(f"s_sleep {PSLEEP}")
    a(f"s_branch L_pl{L}")
a(f"""
L_gw:
s_sub_u32 s58, s58, 1
s_cmp_eq_u32 s58, 0
s_cbranch_scc1 L_gw_ok
s_sleep 2
global_load_dwordx2 v[{GW}:{GW+1}], v{DBG}, s[12:13] sc1
s_waitcnt vmcnt(0)
v_readfirstlane_b32 s46, v{GW}
v_readfirstlane_b32 s47, v{GW+1}
s_cmp_lg_u32 s47, 8
s_cbranch_scc1 L_gw
s_branch L_gw_ok
""")
if FAST:
    a("L_slow:")
    merge_and_publish(" sc1")
    a("s_branch L_pub_done")
for kind, ctx in rare:
    a(f"L_rare{kind}{ctx}:")
    a("s_nop 15")
    for o in max_ops(XB, TMP): a(o)
    a(f"""
v_max_f32 v{TMP}, 0, v{TMP}
v_sub_f32 v{TMP+1}, 0, v{TMP}
v_exp_f32 v{TMP+1}, v{TMP+1}
v_add_f32 v{M}, v{M}, v{TMP}
v_mul_f32 v{LSUM}, v{LSUM}, v{TMP+1}
""")
    for r in range(64): a(f"v_mul_f32 v{O0+r}, v{O0+r}, v{TMP+1}")
    for i in range(16): a(f"v_sub_f32 v{XB+i}, v{XB+i}, v{TMP}")
    nq = 4 if kind == "C1" else 8
    for q in range(nq):
        for _, o in e_ops(q) + ac_ops(q): a(o)
    if kind == "C1":
        for _, o in e_ops(4): a(o)
    a.fence()
    a(f"s_branch L_back{kind}{ctx}")
a.raw(f""".section .rodata,"a"
.p2align 6
.amdhsa_kernel {NAME}
  .amdhsa_next_free_vgpr {NV}
  .amdhsa_next_free_sgpr 98
  .amdhsa_accum_offset {NV}
  .amdhsa_group_segment_fixed_size 0
  .amdhsa_kernarg_size 48
  .amdhsa_user_sgpr_count 2
  .amdhsa_user_sgpr_kernarg_segment_ptr 1
  .amdhsa_system_sgpr_workgroup_id_x 1
.end_amdhsa_kernel""")
print(a.text())
print(f"; NV={NV} LDS={LDS} nops inserted: {a.nops}; steady={[len(s) for s in STEADY]}", file=sys.stderr)
```
